```python
import torch

def _softmax(x, axis=-1):
    return torch.softmax(x, dim=axis)
def _gelu(x):
    return torch.nn.functional.gelu(x, approximate="tanh")
def _silu(x):
    return torch.nn.functional.silu(x)
def _sigmoid(x):
    return torch.sigmoid(x)
def _layernorm(x, axis=-1, eps=1e-5):
    m = x.mean(dim=axis, keepdim=True)
    v = x.var(dim=axis, keepdim=True, unbiased=False)
    return (x - m) / torch.sqrt(v + eps)
def _scatter_add(tgt, idx, src, axis=0):
    return tgt.clone().index_add_(axis, idx, src)
def _segment_sum(src, seg, n):
    out = torch.zeros((n,) + src.shape[1:], dtype=src.dtype)
    return out.index_add_(0, seg, src)
def _pad(x, pw):
    flat = tuple(v for pair in reversed(pw) for v in pair)
    return torch.nn.functional.pad(x, flat)

kernel_name = 'gated_mix__sliding_block_cached__swiglu_ffn__decode'

def setup_inputs():

    _w = (lambda a: (lambda t: t.to(torch.bfloat16) if t.is_floating_point() else t)(torch.as_tensor(a)))
    def _A_setup():
        B, Sq, D = 2, 1, 512
        Hq, Hkv, Sk, Dh = 32, 8, 16384, 128
        assert Hq % Hkv == 0, (Hq, Hkv)
        return {
            "x": _w((lambda *s: torch.randn(*s, dtype=torch.bfloat16) * 0.05)(B, Sq, D)),
            "k_cache": _w((lambda *s: torch.randn(*s, dtype=torch.bfloat16) * 6.4)(B, Hkv, Sk, Dh)),
            "v_cache": _w((lambda *s: torch.randn(*s, dtype=torch.bfloat16) * 0.4)(B, Hkv, Sk, Dh)),
            "wq": _w((lambda *s: torch.randn(*s, dtype=torch.bfloat16) * 6.4)(D, Hq * Dh) * (D ** -0.5)),
            "wo": _w((lambda *s: torch.randn(*s, dtype=torch.bfloat16) * 0.4)(Hq * Dh, D) * ((Hq * Dh) ** -0.5)),
        }
    _A_in = _A_setup()

    def _B_setup():
        B, S, D, F = 2, 1, 512, 1792
        return {
            "x": _w((lambda *s: torch.randn(*s, dtype=torch.bfloat16) * 0.05)(B, S, D)),
            "w_gate": _w((lambda *s: torch.randn(*s, dtype=torch.bfloat16) * 0.05)(D, F)),
            "w_up": _w((lambda *s: torch.randn(*s, dtype=torch.bfloat16) * 0.05)(D, F)),
            "w_down": _w((lambda *s: torch.randn(*s, dtype=torch.bfloat16) * 0.05)(F, D)),
        }
    _B_in = _B_setup()

    return {
        "A_x": _A_in["x"],
        "A_k_cache": _A_in["k_cache"],
        "A_v_cache": _A_in["v_cache"],
        "A_wq": _A_in["wq"],
        "A_wo": _A_in["wo"],
        "B_x": _B_in["x"],
        "B_w_gate": _B_in["w_gate"],
        "B_w_up": _B_in["w_up"],
        "B_w_down": _B_in["w_down"],
        "gate_w": _w((lambda *s: torch.randn(*s, dtype=torch.bfloat16) * 0.05)(512) * 16.0),
    }

def reference(A_x, A_k_cache, A_v_cache, A_wq, A_wo, B_x, B_w_gate, B_w_up, B_w_down, gate_w):
    def _A_ref(x, k_cache, v_cache, wq, wo):
        B, Sq, D = x.shape
        Hq, Dh = 32, 128
        Hkv, Sk = k_cache.shape[1], k_cache.shape[2]
        W = min(4096, max(256, Sk // 4))
        rep = Hq // Hkv
        q = (lambda x, *d: x.permute(*d))((x @ wq).reshape(B, Sq, Hq, Dh), 0, 2, 1, 3)
        k = (lambda x, n, axis: torch.repeat_interleave(x, n, dim=axis))(k_cache[:, :, Sk - W:, :], rep, axis=1)
        v = (lambda x, n, axis: torch.repeat_interleave(x, n, dim=axis))(v_cache[:, :, Sk - W:, :], rep, axis=1)
        scores = torch.einsum("bhqd,bhkd->bhqk", q, k) * (Dh ** -0.5)
        p = _softmax(scores, axis=-1)
        o = torch.einsum("bhqk,bhkd->bhqd", p, v)
        return (lambda x, *d: x.permute(*d))(o, 0, 2, 1, 3).reshape(B, Sq, Hq * Dh) @ wo

    def _B_ref(x, w_gate, w_up, w_down):
        g = _silu(x @ w_gate)
        u = x @ w_up
        return (g * u) @ w_down

    x = A_x
    g = _sigmoid((x * gate_w).sum(-1, keepdims=True))
    a = _A_ref(x, A_k_cache, A_v_cache, A_wq, A_wo)
    b = _B_ref(x, B_w_gate, B_w_up, B_w_down)
    return g * a + (1 - g) * b
```

```python
import re

def _regs(tok):
    tok = tok.strip()
    tok = tok.lstrip('-')
    if tok.startswith('abs(') or tok.startswith('|'):
        tok = tok.replace('abs(', '').replace(')', '').replace('|', '')
    m = re.fullmatch(r'([vsa])\[(\d+):(\d+)\]', tok)
    if m:
        return {(m.group(1), i) for i in range(int(m.group(2)), int(m.group(3)) + 1)}
    m = re.fullmatch(r'([vsa])(\d+)', tok)
    if m:
        return {(m.group(1), int(m.group(2)))}
    if tok in ('vcc', 'vcc_lo', 'vcc_hi'): return {('x', 'vcc')}
    if tok in ('exec', 'exec_lo', 'exec_hi'): return {('x', 'exec')}
    if tok == 'm0': return {('x', 'm0')}
    return set()

TRANS = ('v_exp_f32', 'v_log_f32', 'v_rcp_f32', 'v_rsq_f32', 'v_sqrt_f32', 'v_sin_f32', 'v_cos_f32')

class Ins:
    def __init__(self, text):
        self.text = text
        t = text.split(';')[0].strip()
        parts = t.split(None, 1)
        self.mn = mn = parts[0]
        rest = parts[1] if len(parts) > 1 else ''
        ops = [o.strip() for o in rest.split(',')]
        toks = []
        for o in ops:
            toks.append(o.split()[0] if o else '')
        self.mods = rest
        R = [_regs(x) for x in toks]
        self.w = set(); self.r = set()
        self.cls = 'other'
        self.states = 1
        allr = lambda a: set().union(*a) if a else set()
        if mn == 's_nop':
            self.states = int(toks[0], 0) + 1
            self.cls = 'salu'
        elif mn.startswith('v_mfma'):
            self.cls = 'mfma'; self.w = R[0]; self.ab = R[1] | R[2]; self.c = R[3]; self.r = self.ab | self.c
        elif mn.startswith('v_'):
            self.cls = 'valu'
            base = mn.replace('_e32', '').replace('_e64', '').replace('_dpp', '').replace('_sdwa', '')
            self.base = base
            if base.startswith('v_permlane') and 'swap' in base:
                self.w = R[0] | R[1]; self.r = R[0] | R[1]
            elif base.startswith('v_cmp'):
                self.w = R[0]; self.r = allr(R[1:])
            elif base in ('v_add_co_u32', 'v_sub_co_u32', 'v_addc_co_u32'):
                self.w = R[0] | R[1]; self.r = allr(R[2:])
            else:
                self.w = R[0]; self.r = allr(R[1:])
                if base.startswith(('v_fmac', 'v_dot2c', 'v_writelane')) : self.r |= R[0]
            self.dpp = any(k in rest for k in ('row_', 'quad_perm', 'wave_'))
            if self.dpp: self.r |= R[0]
            self.trans = base in TRANS
        elif mn.startswith('ds_'):
            self.cls = 'ds'
            if mn.startswith(('ds_read', 'ds_bpermute', 'ds_permute', 'ds_swizzle')) or '_rtn' in mn:
                self.w = R[0]; self.r = allr(R[1:])
            else:
                self.r = allr(R)
        elif mn.startswith(('buffer_', 'global_')):
            self.cls = 'vmem'
            self.lds = (' lds' in (' ' + rest)) and rest.rstrip().endswith('lds') or '_lds_' in mn
            self.store = 'store' in mn or 'atomic' in mn
            self.data = set()
            if self.lds:
                self.r = allr(R) | {('x', 'm0')}
            elif self.store:
                self.r = allr(R)
                self.data = R[0] if mn.startswith('buffer_') else R[1]
                self.wide = 'x4' in mn or 'x3' in mn
            else:
                self.w = R[0]; self.r = allr(R[1:])
        elif mn.startswith('s_'):
            self.cls = 'salu'
            if mn.startswith(('s_cmp', 's_cbranch', 's_branch', 's_waitcnt', 's_barrier', 's_sleep', 's_setprio', 's_endpgm', 's_bitcmp')):
                self.r = allr(R)
            else:
                self.w = R[0]; self.r = allr(R[1:])
                if 'saveexec' in mn: self.w |= {('x', 'exec')}

def need(p, c):
    n = 0
    isv = lambda S: {x for x in S if x[0] in 'va'}
    iss = lambda S: {x for x in S if x[0] == 's' or x == ('x', 'vcc')}
    if p.cls == 'valu':
        vw = isv(p.w); sw = iss(p.w)
        if c.cls == 'mfma' and vw & c.r: n = max(n, 2)
        if c.cls == 'valu':
            if c.dpp and vw & c.r: n = max(n, 2)
            if c.base.startswith('v_permlane') and vw & c.r: n = max(n, 2)
            if c.base in ('v_readfirstlane_b32', 'v_readlane_b32') and vw & c.r: n = max(n, 1)
            if p.trans and vw & c.r: n = max(n, 1)
            if sw & c.r:
                n = max(n, 4 if c.base in ('v_readlane_b32', 'v_writelane_b32') else 2)
            if p.base.startswith('v_dot') and vw & (c.r | c.w):
                n = max(n, 0 if (p.base == c.base and not (vw & (c.r - c.w))) else 3)
            if 'sdwa' in p.mn and vw & (c.r | c.w): n = max(n, 1)
        if p.base.startswith('v_dot') and c.cls in ('ds', 'vmem', 'mfma') and vw & c.r: n = max(n, 3)
        if c.cls == 'vmem' and sw & c.r: n = max(n, 5)
        if c.cls == 'salu' and sw & c.r: n = max(n, 1)
        if p.trans and c.cls in ('ds', 'vmem') and vw & c.r: n = max(n, 1)
    if p.cls == 'mfma':
        if c.cls == 'mfma':
            if p.w & c.ab: n = max(n, 8)
            if p.w & c.c and p.w != c.c: n = max(n, 6)
            if p.w & c.w and p.w != c.c: n = max(n, 8)
        else:
            if p.w & (c.r | c.w): n = max(n, 8)
        if c.cls == 'valu' and p.c & c.w: n = max(n, 3)
    if p.cls == 'salu':
        if ('x', 'm0') in p.w and c.cls == 'vmem' and getattr(c, 'lds', False): n = max(n, 1)
    if p.cls == 'vmem' and p.store and getattr(p, 'wide', False):
        if p.data & c.w: n = max(n, 2)
    return n

class Asm:
    def __init__(self):
        self.out = []
        self.hist = []
    def raw(self, s):
        self.out.append(s)
    def label(self, name):
        self.out.append(name + ':')
    def flush_hist(self):
        self.hist = []
    def __call__(self, text):
        for line in text.split('\n'):
            line = line.strip()
            if not line or line.startswith(';'):
                if line: self.out.append('    ' + line)
                continue
            if line.endswith(':') or line.startswith('.'):
                self.out.append(line); continue
            ins = Ins(line)
            dist = 0; pad = 0
            for p in reversed(self.hist):
                pad = max(pad, need(p, ins) - dist)
                dist += p.states
                if dist > 20: break
            while pad > 0:
                k = min(pad, 16)
                nop = Ins(f's_nop {k-1}')
                self.out.append(f'    s_nop {k-1}')
                self.hist.append(nop); pad -= k
            self.out.append('    ' + line)
            self.hist.append(ins)
            self.hist = self.hist[-24:]
            if ins.mn in ('s_branch', 's_endpgm'): self.hist = []
    def text(self):
        return '\n'.join(self.out) + '\n'
```

```python
import sys, os
sys.path.insert(0, 'tools')
from asmlib import Asm

KN = 'gated_mix__sliding_block_cached__swiglu_ffn__decode_kernel'
REF = 'gated_mix__sliding_block_cached__swiglu_ffn__decode.s.ref'
HDR = open(REF).read().split('; Override launch')[0] if os.path.exists(REF) else ''

QB, HB, ST, OB, PB, CAL = 0x10000, 0x30000, 0x50000, 0x60000, 0x100000, 0x180000
WS_SPAN = 0x200000
STAMP = 0x8000000
L_V = 65536
L_GU = L_V + 49152
L_WD, L_WO = 16384, 24576
L_Q = 131072
QS, PS = 320, 576
L_P = L_Q + 1280
L_MISC = L_P + 2304
O_MX = 0
O_PROG, O_CMAX, O_CL, O_KD, O_CO, O_FB, O_FG, O_CC = [32 + 4 * k for k in range(8)]
O_FT, O_TAG, O_G = 64, 68, 72
O_GD, O_R0, O_R1 = 96, 104, 108
L_HA = L_MISC + 256
L_CR = L_Q + 4096
assert L_HA + 256 <= L_CR
L_WQ = L_CR + 4096
LDS_BYTES = L_WQ + 16384
NW = 15
ROLES = [('A', [1]), ('B', [2]), ('L', [0]), ('att', list(range(3, 11))), ('C', [11, 12, 13, 14])]

DOC = '''; ---------------------------------------------------------------------------------------------
; One launch, 256 workgroups (one per CU), 15 waves each.  wg = 8*i + G, G = kv head.
;   wave 0      loader : streams wq tile, gate/up tile, K chunk, V chunk, w_down tile, wo tile into LDS
;   wave 1 (A)  x@wq tile -> partial q to the group, gathers q for (batch, 4 heads)
;   waves 11-14 merge the 16 chunk partials per batch (max/sum rescale), times wo rows (+ FFN rows),
; epoch word at d_ws[0]; stores stay in the XCD L2 only when the whole group reported the same XCD.
; ---------------------------------------------------------------------------------------------'''

def gen(ampall=False, light=False, stamps=False, limit=1 << 22, pol='nt', W=36, Ws=None, Wv=None, We=None, rot=1,
        vph=(6, 8), force_global=False, ktry=6, agap=4, order=('wq', 'gu', 'k', 'v', 'wd', 'wo'), lead=3, thr=64,
        pvpipe=False, cosleep=0, numa=True, warm=True, wpol=None, adel=0, bdel=3):
    a = Asm()
    fin = stamps or light
    if light: stamps = False
    wpol = pol if wpol is None else wpol
    NG = dict(wq=4, k=16, v=16, gu=4, wd=2, wo=4)
    G0 = {}; n = 0
    for ph in order: G0[ph] = n; n += NG[ph]
    END = n
    assert order.index('gu') < order.index('v') and 1 <= lead <= 4
    DP = [d + ' row_mask:0xf bank_mask:0xf' for d in ('quad_perm:[1,0,3,2]', 'quad_perm:[2,3,0,1]', 'row_half_mirror')]
    uid = [0]

    def stamp(k):
        if stamps or (fin and k == 0): a(f's_memrealtime s[{72+2*k}:{73+2*k}]')
    def guard():
        a(f's_add_u32 s68, s68, 1\ns_cmp_gt_u32 s68, {limit}\ns_cbranch_scc1 L_abort')
    def spin_lds(off, val, tmp, sleep=1, extra=None, cached=False):
        uid[0] += 1; n = uid[0]
        a(f's_branch L_sp{n}c' if cached else f's_branch L_sp{n}b')
        a(f'L_sp{n}:')
        guard()
        if sleep: a(f's_sleep {sleep}')
        a(f'L_sp{n}b:')
        a(f'ds_read_b32 v{tmp}, v14 offset:{off}')
        if extra: a(extra)
        a('s_waitcnt lgkmcnt(0)')
        if cached: a(f'L_sp{n}c:')
        a(f'v_cmp_gt_i32 vcc, {val}, v{tmp}')
        a(f's_cbranch_vccnz L_sp{n}')
    def tagbytes():
        a('s_and_b32 s48, s52, 0xf8\ns_bfe_u32 s49, s52, 0x80008\ns_bfe_u32 s50, s52, 0x80010\ns_lshr_b32 s51, s52, 24')
    def clean_check(base, nload, vor, first=True):
        for u in range(nload):
            r = base + 4 * u
            for e in range(4):
                a(f'v_xor_b32 v{r+e}, s{48+e}, v{r+e}')
            if first and u == 0:
                a(f'v_or3_b32 v{vor}, v{r}, v{r+1}, v{r+2}\nv_or_b32 v{vor}, v{vor}, v{r+3}')
            else:
                a(f'v_or3_b32 v{vor}, v{vor}, v{r}, v{r+1}\nv_or3_b32 v{vor}, v{vor}, v{r+2}, v{r+3}')
    def branch_if_bad(vor, label):
        a(f'v_and_b32 v{vor}, 0xff, v{vor}\nv_cmp_ne_u32 vcc, 0, v{vor}\ns_cbranch_vccnz {label}')
    def slow_path(base, nload, retry):
        a(f's_add_u32 s70, s70, 1\ns_cmp_lt_u32 s70, {ktry}\ns_cbranch_scc1 {retry}')
        a('s_mov_b32 exec_hi, 0\nbuffer_store_dwordx4 v[112:115], v111, s[44:47], s71 offen sc1\ns_mov_b64 exec, -1')
        a('v_mov_b32 v4, 0')
        for u in range(nload):
            r = base + 4 * u
            a(f'v_and_b32 v{r}, -8, v{r}\nv_or3_b32 v4, v4, v{r}, v{r+1}\nv_or3_b32 v4, v4, v{r+2}, v{r+3}')
        branch_if_bad(4, retry)
    def finish():
        a('s_branch L_fin' if fin else 's_endpgm')
    def count(off, rtn=None):
        op = f'ds_add_rtn_u32 v{rtn}, v14, v15' if rtn else 'ds_add_u32 v14, v15'
        a(f's_mov_b64 exec, 1\n{op} offset:{off}\ns_mov_b64 exec, -1')

    def sec_entry():
        stamp(0)
        a('s_load_dwordx16 s[8:23], s[0:1], 0\ns_load_dwordx8 s[24:31], s[0:1], 64\ns_load_dwordx2 s[32:33], s[0:1], 96')
        a('s_cmp_ge_u32 s2, 256\ns_cbranch_scc1 L_exit')
        a('v_lshrrev_b32 v1, 6, v0\nv_and_b32 v0, 63, v0')
        a('s_and_b32 s4, s2, 7\ns_lshr_b32 s5, s2, 3')
        a('v_readfirstlane_b32 s3, v1')
        a('v_lshrrev_b32 v1, 4, v0\nv_and_b32 v2, 15, v0')
        a(f'v_mov_b32 v14, {L_MISC}\nv_mov_b32 v15, 1')
        a('s_mov_b32 s39, 0x20000\ns_mov_b32 s43, 0x20000\ns_mov_b32 s47, 0x20000\ns_mov_b32 s67, 0x20000')
        a(f's_mov_b32 s46, {WS_SPAN}\ns_mov_b32 s68, 0')
        a('; s7 = FFN 64-column block, s34 = workgroups of this group with FFN work, s54 = i&3, s53 = i>>2')
        a('s_min_u32 s7, s4, 4\ns_mul_i32 s34, s4, 3\ns_add_u32 s7, s7, s34\ns_lshr_b32 s34, s5, 3\ns_add_u32 s7, s7, s34')
        a('s_cmp_lt_u32 s4, 4\ns_cselect_b32 s34, 32, 24')
        a('s_and_b32 s54, s5, 3\ns_lshr_b32 s53, s5, 2')
        a('s_cmp_eq_u32 s3, 0\ns_cbranch_scc1 L_loader')
        a('s_cmp_eq_u32 s3, 3\ns_cbranch_scc0 L_rest1')
        a('s_getpc_b64 s[60:61]')
        a('L_pc:')
        a('s_sub_u32 s60, s60, L_pc-L_first\ns_subb_u32 s61, s61, 0')
        a('v_lshlrev_b32 v3, 7, v0\nglobal_load_dword v122, v3, s[60:61]')
        a('v_add_u32 v3, 0x2000, v3\nv_min_u32 v3, L_abort-L_first, v3\ns_mov_b32 exec_hi, 0\nglobal_load_dword v123, v3, s[60:61]\ns_mov_b64 exec, -1')
        a('L_rest1:')
        a('s_waitcnt lgkmcnt(0)')
        a('s_mov_b64 s[44:45], s[32:33]')
        a('s_cmp_gt_u32 s3, 2\ns_cbranch_scc0 L_ab')
        a('s_barrier')
        a('s_cmp_lt_u32 s3, 11\ns_cbranch_scc1 L_att')
        a('s_branch L_c_main')
        a('L_exit:')
        a('s_endpgm')
        a('L_ab:')
        a('s_load_dword s52, s[32:33], 0')
        a('s_setprio 3')
        a('s_mov_b64 s[64:65], s[8:9]\ns_mov_b32 s66, 2048\ns_lshl_b32 s59, s54, 8')
        a('v_bfe_u32 v7, v2, 2, 1\nv_lshlrev_b32 v7, 10, v7\nv_lshl_add_u32 v7, v1, 4, v7\nv_lshlrev_b32 v13, 4, v0')
        for ks in range(4):
            a(f'buffer_load_dwordx4 v[{16+4*ks}:{19+4*ks}], v7, s[64:67], s59 offen offset:{ks*64}')
        a('s_cmp_eq_u32 s3, 1\ns_cbranch_scc1 L_ab1')
        a('s_mov_b64 s[40:41], s[26:27]\ns_mov_b32 s42, 1024')
        a('buffer_load_dwordx4 v[116:119], v13, s[64:67], 0 offen\nbuffer_load_dwordx4 v[120:123], v13, s[64:67], 0 offen offset:1024\nbuffer_load_dwordx4 v[124:127], v13, s[40:43], 0 offen')
        a('L_ab1:')
        a('s_barrier')
        a('s_branch L_ab2')

    def sec_loader():
        nonlocal Ws, We
        a('L_loader:')
        a('s_setprio 2')
        a('v_mov_b32 v8, 0xff800000\nv_cmp_gt_u32 vcc, 4, v0\nv_lshl_add_u32 v3, v0, 2, v14\nv_cndmask_b32 v4, 0, v8, vcc\nds_write_b32 v3, v4')
        a('v_lshrrev_b32 v10, 3, v0\nv_and_b32 v11, 1, v1\nv_lshlrev_b32 v11, 1, v11\nv_and_b32 v12, 7, v0\nv_xor_b32 v11, v11, v12\nv_lshlrev_b32 v11, 4, v11')
        def tile_voff(stride):
            d = 8 * stride - 1024
            a(f'v_mul_u32_u24 v3, {stride}, v10\nv_add_u32 v3, v3, v11\nv_xor_b32 v4, 64, v3\nv_add_u32 v4, {d}, v4\nv_add_u32 v5, {2*d}, v3\nv_add_u32 v6, {2*d}, v4')
        def setup(ph):
            a(f'; ---- {ph}')
            if ph == 'wq':
                tile_voff(8192)
                a('s_lshl_b32 s56, s4, 3\ns_add_u32 s56, s56, s53\ns_lshl_b32 s57, s54, 13\ns_add_u32 s56, s56, s57\ns_lshl_b32 s56, s56, 7')
                return 's[14:15]', 0x400000, L_WQ, 32 * 8192
            if ph == 'gu':
                tile_voff(3584)
                a('s_mul_i32 s56, s54, 3584\ns_add_u32 s56, s56, s7\ns_lshl_b32 s56, s56, 7')
                return None, 1835008, L_GU, 32 * 3584
            if ph == 'k':
                a('s_lshr_b32 s60, s5, 4\ns_lshl_b32 s61, s60, 3\ns_add_u32 s61, s61, s4\ns_lshl_b32 s61, s61, 22')
                a('s_and_b32 s57, s5, 15\ns_lshl_b32 s62, s57, 16\ns_add_u32 s61, s61, s62\ns_add_u32 s61, s61, 0x300000')
                a(f's_mul_i32 s55, s57, {rot*4096}')
                a('v_xor_b32 v3, v1, v2\nv_lshlrev_b32 v3, 4, v3\nv_lshl_add_u32 v3, v1, 8, v3')
                a('v_xor_b32 v4, 64, v3\nv_xor_b32 v5, 0x80, v3\nv_xor_b32 v6, 0xc0, v3')
                return 's[10:11]', 0x4000000, 0, None
            if ph == 'v':
                a('v_lshlrev_b32 v3, 1, v1\nv_xor_b32 v3, v3, v2\nv_lshlrev_b32 v3, 4, v3\nv_lshl_add_u32 v3, v1, 8, v3')
                a('v_mov_b32 v4, v3\nv_xor_b32 v5, 0x80, v3\nv_xor_b32 v6, 0x80, v3')
                return 's[12:13]', 0x4000000, L_V, None
            if ph == 'wd':
                a('v_lshlrev_b32 v3, 10, v1\nv_lshl_add_u32 v3, v2, 4, v3\nv_add_u32 v4, 15360, v3\nv_add_u32 v5, 30720, v3\nv_add_u32 v6, 46080, v3')
                a('s_lshl_b32 s56, s7, 6\ns_and_b32 s57, s53, 1\ns_lshl_b32 s57, s57, 3\ns_add_u32 s56, s56, s57\ns_lshl_b32 s56, s56, 10\ns_lshl_b32 s57, s54, 8\ns_add_u32 s56, s56, s57')
                return 's[24:25]', 1835008, L_WD, 4096
            if ph == 'wo':
                a('v_lshlrev_b32 v3, 12, v1\nv_lshl_add_u32 v3, v2, 4, v3\nv_add_u32 v4, 15360, v3\nv_add_u32 v5, 30720, v3\nv_add_u32 v6, 46080, v3')
                a('s_lshl_b32 s56, s4, 3\ns_add_u32 s56, s56, s53\ns_lshl_b32 s56, s56, 16\ns_lshl_b32 s57, s54, 8\ns_add_u32 s56, s56, s57')
                return 's[16:17]', 0x400000, L_WO, 1024
        Ws = W if Ws is None else Ws
        We = W if We is None else We
        nb = Ws // 4
        known = [0]
        def signal(issued, upto):
            while known[0] < upto:
                known[0] += 1
                a(f'v_mov_b32 v9, {known[0]}\ns_waitcnt vmcnt({4*(issued-known[0])})\nds_write_b32 v14, v9 offset:{O_PROG}')
                if known[0] == G0['v'] + 16: stamp(3)
        first = True; kd_checked = False
        for ph in order:
            ptr, size, lds, gstep = setup(ph)
            a(f's_mov_b32 s38, {size}\ns_mov_b32 m0, {lds}')
            if first: a('s_waitcnt lgkmcnt(0)'); first = False
            if ph == 'gu': a('s_bitcmp0_b32 s5, 2\ns_cselect_b64 s[36:37], s[20:21], s[22:23]')
            else: a(f's_mov_b64 s[36:37], {ptr}')
            if ph in ('gu', 'wd'): a('s_cmp_lt_u32 s5, s34\ns_cselect_b32 s38, s38, 0')
            if lds < L_V and ph != 'k' and not kd_checked:
                spin_lds(O_KD, 8, 12, sleep=0); kd_checked = True
            p = pol if ph in ('k', 'v') else wpol
            win = (We if G0[ph] > G0['v'] else (Wv or W) if ph == 'v' else W) // 4
            g = G0[ph]; gend = g + NG[ph]
            while g < gend:
                free = nb if g < nb else known[0] + win
                waits = g >= free
                e = gend if waits else min(gend, free)
                if ph == 'v' and g < G0['v'] + 12: e = min(e, G0['v'] + 12)
                if waits:
                    signal(g, g - win)
                    a(f'v_mov_b32 v9, {known[0]}')
                uid[0] += 1; lid = uid[0]
                if e - g > 1: a(f'L_ld{lid}:')
                if gstep is None: a('s_and_b32 s55, s55, 0xffff\ns_add_u32 s56, s61, s55')
                if waits: a(f'v_add_u32 v9, 1, v9\ns_waitcnt vmcnt({4*win-4})\nds_write_b32 v14, v9 offset:{O_PROG}')
                for j in range(4):
                    a(f'buffer_load_dwordx4 v{3+j}, s[36:39], s56 offen offset:{j*1024} {p} lds')
                a('s_add_u32 s55, s55, 4096' if gstep is None else f's_add_u32 s56, s56, {gstep}')
                a('s_add_u32 m0, m0, 4096')
                if e - g > 1: a(f's_cmp_lt_u32 m0, {lds + (e-G0[ph])*4096}\ns_cbranch_scc1 L_ld{lid}')
                if waits: known[0] += e - g
                g = e
                if g == nb: a('s_waitcnt lgkmcnt(0)\ns_barrier')
                if ph == 'v' and g == G0['v'] + 12: spin_lds(O_GD, 2, 12, sleep=0)
            if ph == 'k': stamp(1)
            if ph == 'v': stamp(2)
        stamp(4)
        signal(END, END)
        stamp(5)
        a('s_waitcnt lgkmcnt(0)')
        finish()

    def sec_ab():
        a('L_ab2:')
        a('s_cmp_eq_u32 s3, 1')
        a(f's_mov_b32 s55, {L_GU}\ns_cselect_b32 s55, {L_WQ}, s55\ns_cselect_b32 s61, {G0["wq"]+1}, {G0["gu"]+1}')
        a('v_lshrrev_b32 v8, 2, v2\nv_lshl_add_u32 v8, v1, 3, v8\nv_lshlrev_b32 v8, 7, v8')
        a('v_and_b32 v9, 3, v2\nv_lshl_add_u32 v8, v9, 3, v8\nv_add_u32 v8, s55, v8')
        a('v_lshrrev_b32 v9, 3, v2\nv_and_b32 v10, 1, v1\nv_lshl_add_u32 v9, v10, 1, v9')
        a('v_lshl_add_u32 v8, v9, 5, v8')
        a('v_xor_b32 v9, 32, v8\nv_xor_b32 v10, 64, v8\nv_xor_b32 v11, 0x60, v8')
        a('v_mov_b32 v12, 0xffffff00')
        a(f's_lshl_b32 s56, s4, 14\ns_lshl_b32 s57, s54, 11\ns_add_u32 s56, s56, s57\ns_lshl_b32 s57, s53, 8\ns_add_u32 s56, s56, s57\ns_add_u32 s56, s56, {QB}')
        a(f's_lshl_b32 s57, s7, 12\ns_and_b32 s58, s5, 7\ns_lshl_b32 s58, s58, 9\ns_add_u32 s57, s57, s58\ns_add_u32 s57, s57, {HB}')
        a('s_cmp_eq_u32 s3, 1\ns_cselect_b32 s71, s56, s57\ns_cselect_b32 s57, 13, 8')
        a('v_lshlrev_b32 v111, s57, v1\nv_lshl_add_u32 v111, v2, 4, v111')
        a('s_getreg_b32 s60, hwreg(HW_REG_XCC_ID, 0, 3)\ns_mov_b32 s70, 0')
        if force_global: a('s_add_u32 s60, s60, s5\ns_and_b32 s60, s60, 7')
        a('s_waitcnt lgkmcnt(0)')
        a('s_add_u32 s52, s52, 0x01010108')
        tagbytes()
        a('s_or_b32 s48, s48, s60')
        a('s_cmp_eq_u32 s3, 1\ns_cbranch_scc0 L_b_gate')
        a('L_ab_gemv:')
        stamp(1)
        a('v_mov_b32 v5, -1\ns_waitcnt vmcnt(0)')
        for ks in range(4):
            spin_lds(O_PROG, 's61', 5, sleep=0 if ks else 1, cached=True)
            for t in range(4):
                for h in range(2):
                    r = 32 + t * 4 + 2 * h + (ks & 1) * 16
                    a(f'ds_read_b64_tr_b16 v[{r}:{r+1}], v{8+t} offset:{ks*4096+h*512}')
            a('s_add_u32 s61, s61, 1')
            for t in range(4):
                a(f's_waitcnt lgkmcnt({6-2*t})')
                r = 32 + t * 4 + (ks & 1) * 16
                cacc = '0' if ks == 0 else f'v[{92+4*t}:{95+4*t}]'
                a(f'v_mfma_f32_16x16x32_bf16 v[{92+4*t}:{95+4*t}], v[{16+4*ks}:{19+4*ks}], v[{r}:{r+3}], {cacc}')
        stamp(2)
        count(O_GD)
        for t in range(4):
            a(f'v_and_or_b32 v{112+t}, v{92+4*t}, v12, s{48+t}')
        a('s_mov_b32 exec_hi, 0\nbuffer_store_dwordx4 v[112:115], v111, s[44:47], s71 offen\ns_mov_b64 exec, -1')
        stamp(3)
        a('s_cmp_eq_u32 s3, 1\ns_cbranch_scc0 L_b_h')
        a('; ---- A: gather q')
        a(f's_lshl_b32 s56, s4, 14\ns_lshr_b32 s57, s5, 4\ns_lshl_b32 s57, s57, 13\ns_add_u32 s56, s56, s57\ns_add_u32 s56, s56, {QB}\ns_add_u32 s57, s56, 4096')
        a(f'v_lshrrev_b32 v3, 1, v1\nv_mul_u32_u24 v3, {QS}, v3\nv_and_b32 v4, 1, v1\nv_lshl_add_u32 v3, v4, 7, v3\nv_lshl_add_u32 v3, v2, 1, v3\nv_add_u32 v3, {L_Q}, v3')
        def qloads(b):
            for u in range(8):
                a(f'buffer_load_dwordx4 v[{b+4*u}:{b+3+4*u}], v13, s[44:47], s{56+u//4} offen offset:{(u%4)*1024} sc1')
        def qsum(b):
            for k in range(0, 8, 2):
                a(f'v_pk_add_f32 v[{b+k}:{b+k+1}], v[{b+k}:{b+k+1}], v[{b+k+8}:{b+k+9}]\nv_pk_add_f32 v[{b+k+16}:{b+k+17}], v[{b+k+16}:{b+k+17}], v[{b+k+24}:{b+k+25}]')
            for k in range(0, 8, 2):
                a(f'v_pk_add_f32 v[{16+k}:{17+k}], v[{b+k}:{b+k+1}], v[{b+k+16}:{b+k+17}]')
        a('v_mov_b32 v6, 2')
        if adel: spin_lds(O_PROG, G0['wq'] + 4 + adel, 5, sleep=1, cached=True)
        if agap:
            qloads(64)
            spin_lds(O_PROG, G0['wq'] + 4 + agap, 5, sleep=1)
            qloads(32)
            a('s_waitcnt vmcnt(8)')
            clean_check(64, 8, 4)
            branch_if_bad(4, 'L_a_chk')
            qsum(64)
            a('s_branch L_a_got')
        a('L_a_poll:')
        guard()
        qloads(32)
        a('L_a_chk:')
        a('s_waitcnt vmcnt(0)')
        clean_check(32, 8, 4)
        branch_if_bad(4, 'L_a_slow')
        a('L_a_ok:')
        qsum(32)
        a('L_a_got:')
        stamp(4)
        for hf in range(2):
            for e in (0, 2):
                r = 16 + 4 * hf + e
                a(f'v_cvt_pk_bf16_f32 v{r}, v{r}, v{r+1}')
                a(f'ds_write_b16 v3, v{r} offset:{hf*2*QS+e*32}\nds_write_b16_d16_hi v3, v{r} offset:{hf*2*QS+e*32+32}')
        a(f'v_mov_b32 v7, s52\nds_write_b64 v14, v[6:7] offset:{O_FT}')
        a('s_waitcnt lgkmcnt(0)')
        stamp(5)
        if numa: a('s_branch L_a_cal')
        else: finish()

    def sec_a_extra():
        a('L_a_slow:')
        slow_path(32, 8, 'L_a_poll')
        a('v_mov_b32 v6, 1\ns_branch L_a_ok')
        if numa:
            a('; ---- A: which of the two result copies is homed next to this XCD (speed only)')
            a('L_a_cal:')
            a(f's_lshr_b32 s56, s2, 6\ns_lshl_b32 s56, s56, 14\ns_and_b32 s57, s2, 63\ns_lshl_b32 s57, s57, 7\ns_add_u32 s56, s56, s57\ns_add_u32 s56, s56, {CAL}\ns_add_u32 s57, s56, 8192')
            a('v_mov_b32 v3, 0\ns_mov_b64 exec, 1\ns_setprio 0')
            spin_lds(O_PROG, END - 4, 5, sleep=8)
            spin_lds(O_R0, 4, 5, sleep=0)
            a('buffer_store_dword v3, v3, s[44:47], s56 offen sc1\nbuffer_store_dword v3, v3, s[44:47], s57 offen sc1')
            a('s_waitcnt vmcnt(1)\ns_memtime s[94:95]\ns_waitcnt vmcnt(0)\ns_memtime s[96:97]\ns_waitcnt lgkmcnt(0)')
            a(f's_sub_u32 s96, s96, s94\ns_cmp_gt_u32 s96, {thr}\ns_cselect_b32 s60, 1, 2\nv_mov_b32 v3, s60\nds_write_b32 v14, v3 offset:{O_R1}\ns_waitcnt lgkmcnt(0)')
            finish()

    def sec_b():
        a('L_b_gate:')
        a(f's_lshl_b32 s56, s7, 12\ns_and_b32 s57, s53, 1\ns_lshl_b32 s57, s57, 7\ns_add_u32 s56, s56, s57\ns_add_u32 s56, s56, {HB}')
        a('v_lshrrev_b32 v13, 3, v0\nv_lshlrev_b32 v13, 8, v13\nv_and_b32 v7, 7, v0\nv_lshl_add_u32 v13, v7, 4, v13')
        a('v_bfe_u32 v108, v0, 3, 1')
        a('v_and_b32 v110, 1, v1\nv_lshlrev_b32 v110, 7, v110\nv_lshl_add_u32 v110, v108, 5, v110\nv_and_b32 v109, 3, v0\nv_lshl_add_u32 v110, v109, 3, v110')
        a(f'v_lshrrev_b32 v109, 1, v1\nv_lshl_add_u32 v110, v109, 6, v110\nv_bfe_u32 v109, v0, 2, 1\nv_lshl_add_u32 v110, v109, 2, v110\nv_add_u32 v110, {L_HA}, v110')
        a('v_mov_b32 v4, 0\nv_mov_b32 v5, 0')
        a('s_waitcnt vmcnt(0)')
        for k in range(4): a(f'v_dot2c_f32_bf16 v4, v{116+k}, v{124+k}')
        for k in range(4): a(f'v_dot2c_f32_bf16 v5, v{120+k}, v{124+k}')
        a('v_permlane32_swap_b32 v4, v5\nv_add_f32 v4, v4, v5')
        a('v_mov_b32 v5, v4\nv_permlane16_swap_b32 v4, v5\nv_add_f32 v4, v4, v5')
        for s in (8, 4, 2, 1): a(f'v_add_f32_dpp v4, v4, v4 row_ror:{s} row_mask:0xf bank_mask:0xf')
        a('v_cvt_pk_bf16_f32 v4, v4, v4\nv_and_b32 v4, 0xffff0000, v4')
        a('v_mul_f32 v4, 0xbfb8aa3b, v4\nv_exp_f32 v4, v4\nv_add_f32 v4, 1.0, v4\nv_rcp_f32 v4, v4')
        a('v_cvt_pk_bf16_f32 v4, v4, v4\nv_and_b32 v4, 0xffff0000, v4')
        a('v_sub_f32 v5, 1.0, v4\nv_cvt_pk_bf16_f32 v5, v5, v5\nv_and_b32 v5, 0xffff0000, v5')
        a('v_lshrrev_b32 v6, 5, v0\nv_lshl_add_u32 v6, v6, 2, v14')
        a(f'ds_write2_b32 v6, v4, v5 offset0:{O_G//4} offset1:{O_G//4+2}')
        a(f'ds_write_b32 v14, v15 offset:{O_FG}')
        a(f'v_lshl_add_u32 v6, v108, 2, v14\nds_read_b32 v109, v6 offset:{O_G+8}')
        a('s_waitcnt lgkmcnt(0)')
        a('s_cmp_lt_u32 s5, s34\ns_cbranch_scc1 L_ab_gemv')
        count(O_GD)
        finish()
        a('L_b_slow:')
        slow_path(32, 2, 'L_b_poll')
        a('s_branch L_b_ok')
        a('L_b_h:')
        if bdel: spin_lds(O_PROG, G0['gu'] + 4 + bdel, 5, sleep=1, cached=True)
        a('L_b_poll:')
        guard()
        a('buffer_load_dwordx4 v[32:35], v13, s[44:47], s56 offen sc1\nbuffer_load_dwordx4 v[36:39], v13, s[44:47], s56 offen offset:2048 sc1')
        a('s_waitcnt vmcnt(0)')
        clean_check(32, 2, 4)
        branch_if_bad(4, 'L_b_slow')
        a('L_b_ok:')
        stamp(4)
        for r in (32, 36): a(f'v_permlane32_swap_b32 v{r}, v{r+1}\nv_permlane32_swap_b32 v{r+2}, v{r+3}')
        for r in (32, 36): a(f'v_add_f32 v{r}, v{r}, v{r+1}\nv_add_f32 v{r+2}, v{r+2}, v{r+3}')
        a('v_permlane16_swap_b32 v32, v34\nv_permlane16_swap_b32 v36, v38')
        a('v_add_f32 v32, v32, v34\nv_add_f32 v36, v36, v38')
        a('v_cvt_pk_bf16_f32 v32, v32, v36\nv_and_b32 v36, 0xffff0000, v32\nv_lshlrev_b32 v32, 16, v32')
        a('v_mul_f32 v33, 0xbfb8aa3b, v32\nv_exp_f32 v33, v33\nv_mul_f32 v36, v36, v109\nv_add_f32 v33, 1.0, v33\nv_rcp_f32 v33, v33\nv_mul_f32 v32, v32, v33')
        a('v_cvt_pk_bf16_f32 v32, v32, v32\nv_and_b32 v32, 0xffff0000, v32\nv_mul_f32 v32, v32, v36')
        a('v_cvt_pk_bf16_f32 v32, v32, v32\nds_write_b32 v110, v32')
        a(f'ds_write_b32 v14, v15 offset:{O_FB}')
        a('s_waitcnt lgkmcnt(0)')
        stamp(5)
        finish()

    def sec_att():
        a('L_att:')
        a('s_sub_u32 s3, s3, 3\ns_setprio 1\ns_lshl_b32 s55, s3, 13')
        a('v_xor_b32 v4, v1, v2\nv_lshlrev_b32 v3, 8, v2\nv_lshl_add_u32 v3, v4, 4, v3\nv_add_u32 v3, s55, v3')
        a('v_xor_b32 v4, 64, v3\nv_xor_b32 v5, 0x80, v3\nv_xor_b32 v6, 0xc0, v3')
        a(f'v_and_b32 v12, 3, v2\nv_mul_u32_u24 v13, {QS}, v12\nv_lshl_add_u32 v13, v1, 4, v13\nv_add_u32 v13, {L_Q}, v13')
        a(f's_lshl_b32 s56, s3, 6\ns_add_u32 s56, s56, {L_P}\nv_mul_u32_u24 v7, {PS}, v12\nv_lshl_add_u32 v7, v1, 3, v7\nv_add_u32 v7, s56, v7')
        a('v_lshl_add_u32 v12, v12, 2, v14')
        a(f'v_lshrrev_b32 v9, 2, v2\nv_mul_u32_u24 v8, {PS}, v9\nv_lshl_add_u32 v8, v1, 4, v8\nv_add_u32 v8, {L_P}, v8')
        a('v_lshl_add_u32 v10, v1, 3, v9\nv_lshlrev_b32 v10, 8, v10\nv_and_b32 v11, 1, v1\nv_lshl_add_u32 v9, v11, 2, v9\nv_xor_b32 v9, s3, v9\nv_lshl_add_u32 v10, v9, 5, v10')
        a(f'v_and_b32 v9, 3, v2\nv_lshl_add_u32 v10, v9, 3, v10\nv_add_u32 v10, {L_V}, v10')
        a('v_lshlrev_b32 v11, 14, v1\nv_lshl_add_u32 v11, v9, 2, v11\nv_lshrrev_b32 v72, 2, v2\nv_lshl_add_u32 v11, v72, 8, v11')
        a('s_and_b32 s57, s5, 7\ns_lshl_b32 s57, s57, 4\ns_bfe_u32 s60, s5, 0x10003\ns_lshl_b32 s60, s60, 10\ns_add_u32 s57, s57, s60\ns_lshr_b32 s60, s5, 4\ns_lshl_b32 s60, s60, 7\ns_add_u32 s57, s57, s60')
        a(f's_lshl_b32 s60, s4, 16\ns_add_u32 s57, s57, s60\ns_lshl_b32 s60, s3, 11\ns_add_u32 s57, s57, s60\ns_add_u32 s57, s57, {OB}')
        a(f's_lshl_b32 s56, s4, 5\ns_add_u32 s56, s56, s5\ns_lshl_b32 s56, s56, 6\ns_add_u32 s56, s56, {ST}')
        a('s_mov_b32 s58, 0x3db504f3\ns_mov_b32 s59, 0x3fb8aa3b')
        a('v_lshlrev_b32 v9, 3, v9\nv_mov_b32 v80, 0xffffff00\nv_lshlrev_b32 v81, 4, v1\nv_lshl_add_u32 v82, v1, 2, v14')
        a('v_mov_b32 v84, 0x3f803f80\nv_mov_b32 v85, v84\nv_mov_b32 v86, v84\nv_mov_b32 v87, v84')
        a(f's_lshl_b32 s61, s3, 1\ns_add_u32 s61, s61, {G0["k"]+2}')
        stamp(1)
        spin_lds(O_PROG, 's61', 72, sleep=2)
        stamp(2)
        for t in range(2):
            for ks in range(4):
                r = 16 + (t * 4 + ks) * 4
                a(f'ds_read_b128 v[{r}:{r+3}], v{3+ks} offset:{t*4096}')
        count(O_KD)
        spin_lds(O_FT, 1, 75, sleep=1, extra=f'ds_read_b32 v73, v14 offset:{O_TAG}')
        stamp(3)
        for ks in range(4): a(f'ds_read_b128 v[{48+4*ks}:{51+4*ks}], v13 offset:{ks*64}')
        a('v_readfirstlane_b32 s6, v75\nv_readfirstlane_b32 s52, v73\nv_and_b32 v73, -8, v73\nv_bfe_u32 v9, v73, v9, 8')
        tagbytes()
        if stamps: a('s_waitcnt lgkmcnt(0)')
        for ks in range(4):
            if not stamps: a(f's_waitcnt lgkmcnt({3-ks})')
            for t in range(2):
                d = 64 + t * 4; kf = 16 + (t * 4 + ks) * 4
                cacc = '0' if ks == 0 else f'v[{d}:{d+3}]'
                a(f'v_mfma_f32_16x16x32_bf16 v[{d}:{d+3}], v[{kf}:{kf+3}], v[{48+4*ks}:{51+4*ks}], {cacc}')
        for t in range(2):
            d = 64 + t * 4
            a(f'v_cvt_pk_bf16_f32 v72, v{d}, v{d+1}\nv_cvt_pk_bf16_f32 v73, v{d+2}, v{d+3}')
            a(f'v_lshlrev_b32 v{d}, 16, v72\nv_and_b32 v{d+1}, 0xffff0000, v72\nv_lshlrev_b32 v{d+2}, 16, v73\nv_and_b32 v{d+3}, 0xffff0000, v73')
            for r in range(4): a(f'v_mul_f32 v{d+r}, s58, v{d+r}')
            a(f'v_cvt_pk_bf16_f32 v72, v{d}, v{d+1}\nv_cvt_pk_bf16_f32 v73, v{d+2}, v{d+3}')
            a(f'v_lshlrev_b32 v{d}, 16, v72\nv_and_b32 v{d+1}, 0xffff0000, v72\nv_lshlrev_b32 v{d+2}, 16, v73\nv_and_b32 v{d+3}, 0xffff0000, v73')
        a('v_max3_f32 v74, v64, v65, v66\nv_max3_f32 v74, v74, v67, v68\nv_max3_f32 v74, v74, v69, v70\nv_max_f32 v74, v74, v71')
        a('s_mov_b32 exec_lo, 0x000f000f\ns_mov_b32 exec_hi, 0x000f000f')
        a(f'ds_max_f32 v12, v74 offset:{O_MX}')
        count(O_CMAX)
        spin_lds(O_CMAX, 8, 72, sleep=0, extra=f'ds_read_b32 v74, v12 offset:{O_MX}')
        a('v_mul_f32 v74, 0xbfb8aa3b, v74')
        for r in range(8): a(f'v_fma_f32 v{64+r}, v{64+r}, s59, v74')
        for r in range(8): a(f'v_exp_f32 v{64+r}, v{64+r}')
        a('v_cvt_pk_bf16_f32 v76, v64, v65\nv_cvt_pk_bf16_f32 v77, v66, v67\nv_cvt_pk_bf16_f32 v78, v68, v69\nv_cvt_pk_bf16_f32 v79, v70, v71')
        a('s_mov_b32 exec_lo, 0x000f000f\ns_mov_b32 exec_hi, 0x000f000f')
        a('ds_write2_b64 v7, v[76:77], v[78:79] offset0:0 offset1:4')
        count(O_CL)
        spin_lds(O_CL, 8, 72, sleep=0)
        stamp(4)
        for ks in range(8): a(f'ds_read_b128 v[{16+4*ks}:{19+4*ks}], v8 offset:{ks*64}')
        a(f'ds_read_b32 v72, v14 offset:{O_PROG}\nds_read_b32 v73, v82 offset:{O_MX}')
        a('s_waitcnt lgkmcnt(0)')
        a('s_cmp_eq_u32 s3, 0\ns_cbranch_scc0 L_att_pv')
        for ks in range(8):
            cacc = '0' if ks == 0 else 'v[68:71]'
            a(f'v_mfma_f32_16x16x32_bf16 v[68:71], v[{16+4*ks}:{19+4*ks}], v[84:87], {cacc}')
        a('v_and_or_b32 v76, v73, v80, s48\nv_mov_b32 v78, s50\nv_mov_b32 v79, s51\nv_and_or_b32 v77, v68, v80, s49')
        a('s_mov_b32 exec_lo, 0x00010001\ns_mov_b32 exec_hi, 0x00010001')
        a('s_cmp_eq_u32 s6, 2\ns_cbranch_scc1 L_att_sl')
        a('buffer_store_dwordx4 v[76:79], v81, s[44:47], s56 offen sc1\ns_branch L_att_sd')
        a('L_att_sl:')
        a('buffer_store_dwordx4 v[76:79], v81, s[44:47], s56 offen')
        a('L_att_sd:')
        a('s_mov_b64 exec, -1')
        a('L_att_pv:')
        def pvmm(ks):
            r = 88 + 4 * ks
            cacc = '0' if ks == 0 else 'v[64:67]'
            a(f'v_mfma_f32_16x16x32_bf16 v[64:67], v[{16+4*ks}:{19+4*ks}], v[{r}:{r+3}], {cacc}')
        ks0 = 0; pend = []
        for ks1 in vph:
            spin_lds(O_PROG, G0['v'] + 2 * ks1, 72, sleep=0, cached=True)
            for ks in range(ks0, ks1):
                r = 88 + 4 * ks
                a(f'ds_read_b64_tr_b16 v[{r}:{r+1}], v10 offset:{ks*8192}\nds_read_b64_tr_b16 v[{r+2}:{r+3}], v10 offset:{ks*8192+1024}')
            new = list(range(ks0, ks1))
            todo = pend if pvpipe else new
            for ks in todo:
                a(f's_waitcnt lgkmcnt({2*(ks1-1-ks)})')
                pvmm(ks)
            pend = new if pvpipe else []
            ks0 = ks1
        for ks in pend:
            a(f's_waitcnt lgkmcnt({2*(7-ks)})')
            pvmm(ks)
        count(O_CO)
        a('s_cmp_eq_u32 s6, 2')
        a('v_and_or_b32 v64, v64, v80, v9')
        a('s_cbranch_scc0 L_att_g')
        a('buffer_store_dword v64, v11, s[44:47], s57 offen')
        stamp(5)
        finish()
        a('L_att_g:')
        a('buffer_store_dword v64, v11, s[44:47], s57 offen sc1')
        stamp(5)
        finish()

    def sec_c():
        sh = 14 if numa else 13
        def woread(n):
            a(f'ds_read_b128 v[{16+4*n}:{19+4*n}], v98 offset:{L_WO+n*4096}')
        def oloads():
            for u in range(2):
                a(f'buffer_load_dwordx4 v[{64+4*u}:{67+4*u}], v4, s[44:47], s62 offen offset:{u*1024} sc1')
        def sload():
            a('buffer_load_dwordx4 v[72:75], v6, s[44:47], s61 offen sc1')
        a('L_c_main:')
        a('s_sub_u32 s3, s3, 11')
        a('s_mov_b64 s[64:65], s[28:29]\ns_mov_b32 s66, 2048')
        a('s_lshl_b32 s55, s53, 2\ns_add_u32 s55, s55, s3')
        a(f's_lshl_b32 s61, s4, 11\ns_add_u32 s61, s61, {ST}')
        a(f's_lshl_b32 s62, s4, 16\ns_lshl_b32 s60, s55, 11\ns_add_u32 s62, s62, s60\ns_add_u32 s62, s62, {OB}')
        if warm:
            a('; bring the mailbox lines into L2 early')
            a('v_lshlrev_b32 v3, 7, v0\ns_sub_u32 s60, s61, 2048\nv_mov_b32 v4, s62\nv_mov_b32 v5, s60\nv_cmp_gt_u32 vcc, 16, v0\nv_cndmask_b32 v4, v5, v4, vcc\nv_add_u32 v3, v3, v4')
            a('s_mov_b32 exec_hi, 0\nbuffer_load_dword v122, v3, s[44:47], 0 offen sc1\ns_mov_b64 exec, -1')
        a('s_lshr_b32 s60, s53, 1\ns_lshl_b32 s60, s60, 4\ns_add_u32 s61, s61, s60')
        a('v_and_b32 v12, 1, v0\nv_lshlrev_b32 v12, 4, v12\nv_mov_b32 v13, 0xffff\nv_lshlrev_b32 v12, v12, v13\nv_bfe_u32 v13, v0, 1, 2')
        for k in range(4): a(f'v_cmp_eq_u32 vcc, {k}, v13\nv_cndmask_b32 v{8+k}, 0, v12, vcc')
        a('v_lshrrev_b32 v4, 3, v0\nv_and_b32 v5, 7, v0\nv_bfe_u32 v12, v0, 3, 1\nv_and_b32 v13, 1, v1\nv_lshlrev_b32 v6, 6, v5\nv_lshl_add_u32 v6, v13, 9, v6\nv_lshl_add_u32 v6, v12, 10, v6')
        a(f'v_lshlrev_b32 v126, {sh}, v4\nv_lshl_add_u32 v126, v5, 4, v126')
        a(f's_lshl_b32 s60, s3, 6\ns_add_u32 s60, s60, {L_HA}\nv_lshlrev_b32 v3, 5, v12\nv_lshl_add_u32 v3, v1, 3, v3\nv_add_u32 v3, s60, v3')
        a('v_lshl_add_u32 v72, v12, 2, v14')
        a('v_mov_b32 v124, 0xffffff00\nv_lshlrev_b32 v4, 4, v0\nv_lshlrev_b32 v125, 7, v0')
        a(f's_lshl_b32 s63, s3, 10\nv_add_u32 v98, s63, v4\nv_add_u32 v13, {L_CR}, v98\nv_xor_b32 v7, 0x400, v13\nv_xor_b32 v12, 0x800, v13\nv_xor_b32 v99, 0xc00, v13')
        a('v_and_b32 v2, 1, v1\nv_lshlrev_b32 v2, 2, v2\nv_and_b32 v1, 2, v1\nv_add_u32 v2, v2, v1')
        a(f's_lshl_b32 s59, s4, 3\ns_add_u32 s59, s59, s53\ns_lshl_b32 s58, s54, {sh+3}\ns_add_u32 s58, s58, {PB}')
        a('s_lshl_b32 s57, s59, 7\ns_add_u32 s57, s57, s58')
        a(f's_lshl_b32 s60, s4, {sh}\ns_add_u32 s58, s58, s60\ns_lshl_b32 s60, s53, 4\ns_add_u32 s58, s58, s60')
        a('s_lshr_b32 s60, s59, 5\ns_lshl_b32 s60, s60, 10\ns_lshl_b32 s63, s54, 8\ns_add_u32 s60, s60, s63\ns_and_b32 s63, s59, 15\ns_lshl_b32 s63, s63, 4\ns_add_u32 s60, s60, s63\ns_bfe_u32 s63, s59, 0x10004\ns_lshl_b32 s63, s63, 3\ns_add_u32 s60, s60, s63')
        if numa: a('s_add_u32 s56, s57, 8192\ns_add_u32 s55, s58, 8192')
        spin_lds(O_FG, 1, 127, sleep=8, extra=f'ds_read_b32 v123, v72 offset:{O_G}')
        a('v_mov_b32 v112, 0\nv_mov_b32 v113, 0')
        a('s_cmp_ge_u32 s5, s34\ns_cbranch_scc1 L_c_noh')
        spin_lds(O_FB, 1, 127, sleep=4, extra='ds_read_b64 v[112:113], v3')
        a('L_c_noh:')
        for n in range(2):
            for k in range(4): a(f'v_and_b32 v{40+4*n+k}, v{112+n}, v{8+k}')
        spin_lds(O_CL, 8, 127, sleep=4, extra=f'ds_read_b32 v97, v14 offset:{O_TAG}')
        a('v_readfirstlane_b32 s52, v97')
        tagbytes()
        a('s_setprio 3')
        stamp(1)
        spin_lds(O_CO, 8, 127, sleep=cosleep, extra=f'ds_read_b32 v114, v14 offset:{O_PROG}')
        spin_lds(O_PROG, END - lead, 114, sleep=0, cached=True)
        stamp(3)
        oloads(); sload()
        if stamps: a('s_waitcnt lgkmcnt(0)')
        for n in range(2): a(f'ds_read_b128 v[{32+4*n}:{35+4*n}], v98 offset:{L_WD+n*4096}')
        nearly = 4 - lead
        for n in range(nearly): woread(n)
        for n in range(2):
            a(f's_waitcnt lgkmcnt({nearly+1-n})')
            cacc = '0' if n == 0 else 'v[100:103]'
            a(f'v_mfma_f32_16x16x32_bf16 v[100:103], v[{40+4*n}:{43+4*n}], v[{32+4*n}:{35+4*n}], {cacc}')
        def xcheck(pend):
            for u in range(2):
                a(f's_waitcnt vmcnt({pend+1-u})')
                clean_check(64 + 4 * u, 1, 5, first=(u == 0))
            a('v_and_b32 v5, 0xff, v5\nv_cmp_ne_u32 vcc, 0, v5')
        xcheck(1)
        a('s_waitcnt vmcnt(0)\ns_mov_b64 s[70:71], vcc\ns_cbranch_vccz L_c_schk')
        a('s_mov_b64 exec, vcc')
        oloads()
        a('s_mov_b64 exec, -1\ns_branch L_c_schk')
        a('L_c_late:')
        spin_lds(O_PROG, END, 127, sleep=0)
        for n in range(nearly, 4): woread(n)
        a('s_waitcnt lgkmcnt(0)\ns_branch L_c_mm')
        a('L_c_stat:')
        guard()
        a('s_sleep 2')
        sload()
        a('s_waitcnt vmcnt(0)')
        a('L_c_schk:')
        clean_check(72, 1, 76)
        a(f'v_max_f32_dpp v96, v72, v72 {DP[0]}')
        branch_if_bad(76, 'L_c_stat')
        a(f'v_max_f32_dpp v96, v96, v96 {DP[1]}')
        a(f'ds_read_b32 v127, v14 offset:{O_PROG}')
        late = list(range(nearly, 4))
        def fill():
            if late: woread(late.pop(0))
        fill()
        a(f'v_max_f32_dpp v96, v96, v96 {DP[2]}')
        a('v_mov_b32 v97, v96')
        fill(); fill()
        a('v_permlane16_swap_b32 v96, v97\nv_max_f32 v96, v96, v97')
        a('v_sub_f32 v96, v72, v96\nv_mul_f32 v96, 0x3fb8aa3b, v96\nv_exp_f32 v96, v96')
        fill()
        a('v_mul_f32 v112, v96, v73\nv_mul_f32 v96, v96, v123\nv_mov_b32 v97, v96')
        a(f'v_add_f32_dpp v112, v112, v112 {DP[0]}')
        a('s_cmp_eq_u64 s[70:71], 0')
        a('v_permlane16_swap_b32 v96, v97')
        a(f'v_add_f32_dpp v112, v112, v112 {DP[1]}')
        stamp(2)
        a('s_cbranch_scc1 L_c_ook')
        a('s_mov_b64 exec, s[70:71]\ns_branch L_c_oloop')
        a('L_c_oy:')
        a('s_mov_b64 exec, vcc')
        guard()
        oloads()
        a('L_c_oloop:')
        xcheck(0)
        a('s_cbranch_vccnz L_c_oy')
        a('s_mov_b64 exec, -1')
        a('L_c_ook:')
        stamp(4)
        for e in range(2): a(f'v_mul_f32 v{104+e}, v96, v{64+e}')
        a(f'v_add_f32_dpp v112, v112, v112 {DP[2]}')
        for e in range(2, 4): a(f'v_mul_f32 v{104+e}, v96, v{64+e}')
        a('v_mov_b32 v113, v112')
        for e in range(4): a(f'v_fmac_f32 v{104+e}, v97, v{68+e}')
        a('v_permlane16_swap_b32 v112, v113')
        for k, d in enumerate(DP):
            for e in range(4): a(f'v_add_f32_dpp v{104+e}, v{104+e}, v{104+e} {d}')
            if k == 0: a('v_add_f32 v112, v112, v113')
            if k == 1: a('v_rcp_f32 v112, v112')
        for e in range(4): a(f'v_mul_f32 v{104+e}, v{104+e}, v112')
        if numa: count(O_R0)
        for e in range(4): a(f'v_cvt_pk_bf16_f32 v{104+e}, v{104+e}, v{104+e}')
        def ands(n):
            d = 116 + 4 * (n & 1)
            for k in range(4): a(f'v_and_b32 v{d+k}, v{104+n}, v{8+k}')
        ands(0)
        a(f's_waitcnt lgkmcnt({1 if numa and not stamps else 0})')
        a(f'v_cmp_gt_i32 vcc, {END}, v127\ns_cbranch_vccnz L_c_late')
        a('L_c_mm:')
        for n in range(4):
            if n < 3: ands(n + 1)
            d = 116 + 4 * (n & 1)
            a(f'v_mfma_f32_16x16x32_bf16 v[100:103], v[{d}:{d+3}], v[{16+4*n}:{19+4*n}], v[100:103]')
        a('ds_write_b128 v13, v[100:103]')
        count(O_CC, rtn=127)
        a('ds_read_b128 v[104:107], v7\nds_read_b128 v[108:111], v12\nds_read_b128 v[112:115], v99')
        a('s_waitcnt lgkmcnt(2)')
        a('v_readfirstlane_b32 s63, v127')
        a('v_pk_add_f32 v[104:105], v[104:105], v[100:101]\nv_pk_add_f32 v[106:107], v[106:107], v[102:103]')
        a('s_cmp_eq_u32 s63, 3\ns_cbranch_scc0 L_c_end')
        a('s_waitcnt lgkmcnt(0)')
        a('v_pk_add_f32 v[108:109], v[108:109], v[112:113]\nv_pk_add_f32 v[110:111], v[110:111], v[114:115]')
        a('v_pk_add_f32 v[104:105], v[104:105], v[108:109]\nv_pk_add_f32 v[106:107], v[106:107], v[110:111]')
        for k in range(4): a(f'v_and_or_b32 v{104+k}, v{104+k}, v124, s{48+k}')
        a('buffer_store_dwordx4 v[104:107], v126, s[44:47], s57 offen sc1')
        if numa:
            a('buffer_store_dwordx4 v[104:107], v126, s[44:47], s56 offen sc1')
            spin_lds(O_R1, 1, 108, sleep=1)
            a('v_cmp_eq_u32 vcc, 1, v108\ns_cmp_lg_u64 vcc, 0\ns_cselect_b32 s58, s58, s55')
        stamp(5)
        a('s_waitcnt vmcnt(0)\ns_branch L_c_fp1')
        a('L_c_fpoll:')
        a('s_mov_b64 exec, vcc')
        guard()
        a('L_c_fp1:')
        a('buffer_load_dwordx4 v[64:67], v125, s[44:47], s58 offen sc1')
        a('s_waitcnt vmcnt(0)')
        clean_check(64, 1, 5)
        branch_if_bad(5, 'L_c_fpoll')
        a('s_mov_b64 exec, -1')
        stamp(6)
        a('v_permlane32_swap_b32 v64, v65\nv_permlane32_swap_b32 v66, v67\nv_add_f32 v64, v64, v65\nv_add_f32 v66, v66, v67')
        a('v_permlane16_swap_b32 v64, v66\nv_add_f32 v64, v64, v66')
        for s in (8, 4, 2, 1): a(f'v_add_f32_dpp v64, v64, v64 row_ror:{s} row_mask:0xf bank_mask:0xf')
        a('v_cvt_pk_bf16_f32 v64, v64, v64')
        a('s_mov_b32 exec_lo, 0x00010001\ns_mov_b32 exec_hi, 0x00010001')
        a('buffer_store_short v64, v2, s[64:67], s60 offen')
        a('s_cmp_eq_u32 s2, 0\ns_cbranch_scc0 L_c_end')
        a('; every workgroup has used the tag by now: it becomes the next launch\'s epoch')
        a('s_mov_b64 exec, 1\nv_mov_b32 v4, s52\nv_mov_b32 v5, 0\nbuffer_store_dword v4, v5, s[44:47], 0 offen')
        a('L_c_end:')
        stamp(7)

    def sec_fin():
        a('L_fin:')
        a('s_mov_b64 exec, -1\ns_waitcnt lgkmcnt(0) vmcnt(0)')
        a('s_memrealtime s[90:91]\ns_getreg_b32 s92, hwreg(HW_REG_XCC_ID)\ns_waitcnt lgkmcnt(0)')
        if not ampall:
            for k in range(11): a(f'v_writelane_b32 v4, s{72+2*k}, {k}')
            a('v_writelane_b32 v4, s68, 11\ns_getreg_b32 s93, hwreg(HW_REG_HW_ID)\nv_writelane_b32 v4, s93, 12')
            a(f's_mul_i32 s60, s2, {NW}\ns_add_u32 s60, s60, s69\ns_lshl_b32 s60, s60, 6\ns_add_u32 s60, s60, {STAMP}')
            a('v_lshlrev_b32 v3, 2, v0\nv_add_u32 v3, s60, v3\ns_mov_b64 exec, 0xffff\nglobal_store_dword v3, v4, s[32:33]')
        else:
            a(f's_cmp_eq_u32 s69, 0\ns_cbranch_scc0 L_am1\ns_lshl_b32 s60, s2, 2\ns_add_u32 s60, s60, {STAMP}\nv_mov_b32 v3, s60\nv_mov_b32 v5, s72\ns_mov_b64 exec, 1\nglobal_store_dword v3, v5, s[32:33] sc1\ns_endpgm')
            a('L_am1:')
            a('s_cmp_eq_u32 s2, 0\ns_cbranch_scc0 L_abort\ns_cmp_ge_u32 s69, 11\ns_cbranch_scc0 L_abort')
            a(f's_sleep 100\nv_lshlrev_b32 v3, 4, v0\nv_add_u32 v3, {STAMP}, v3\nglobal_load_dwordx4 v[8:11], v3, s[32:33] sc1\ns_waitcnt vmcnt(0)')
            a('v_subrev_u32 v8, s72, v8\nv_subrev_u32 v9, s72, v9\nv_subrev_u32 v10, s72, v10\nv_subrev_u32 v11, s72, v11\nv_min3_i32 v8, v8, v9, v10\nv_min_i32 v8, v8, v11\nv_max_i32 v8, 0xfffffe00, v8')
            a('s_mov_b32 s61, 0\ns_mov_b32 s62, 0\nL_am2:\ns_nop 4\nv_readlane_b32 s63, v8, s62\ns_nop 4\ns_min_i32 s61, s61, s63\ns_add_u32 s62, s62, 1\ns_cmp_lt_u32 s62, 64\ns_cbranch_scc1 L_am2')
            a('s_sub_u32 s60, s90, s72\ns_sub_u32 s60, s60, s61\ns_mul_i32 s60, s60, 10\ns_min_u32 s60, s60, 100000\ns_add_u32 s60, s60, 2000\ns_add_u32 s60, s60, s61')
            a('L_am3:\ns_memrealtime s[62:63]\ns_waitcnt lgkmcnt(0)\ns_sub_u32 s62, s62, s72\ns_cmp_lt_u32 s62, s60\ns_cbranch_scc1 L_am3')

    a.raw(HDR.rstrip('\n'))
    a.raw(f'; @launch grid=(256,1,1) block=({NW*64},1,1) lds={LDS_BYTES}')
    a.raw(DOC)
    a.raw('.amdgcn_target "amdgcn-amd-amdhsa--gfx950"')
    a.raw('.text\n.p2align 12')
    a('L_first:')
    sec_att(); sec_b(); sec_a_extra()
    a.raw('.fill (0xd00 - (. - L_first)) / 4, 4, 0xbf810000')
    a.raw(f'.globl {KN}\n.p2align 8\n.type {KN},@function\n{KN}:')
    a.flush_hist()
    sec_entry(); sec_loader(); sec_ab()
    a.raw('.p2align 12')
    sec_c()
    if fin: sec_fin()
    a('L_abort:')
    a('s_endpgm')
    a.raw('.section .rodata,"a"\n.p2align 6')
    a.raw(f'.amdhsa_kernel {KN}')
    a.raw('  .amdhsa_next_free_vgpr 128\n  .amdhsa_next_free_sgpr 102\n  .amdhsa_accum_offset 128\n  .amdhsa_group_segment_fixed_size 0\n  .amdhsa_kernarg_size 104')
    a.raw('  .amdhsa_user_sgpr_count 2\n  .amdhsa_user_sgpr_kernarg_segment_ptr 1\n  .amdhsa_system_sgpr_workgroup_id_x 1\n.end_amdhsa_kernel')
    txt = a.text()
    if fin:
        z = ''.join(f'    s_mov_b32 s{74+2*k}, 0\n' for k in range(8)) if stamps else ''
        txt = txt.replace('    v_readfirstlane_b32 s3, v1\n', '    v_readfirstlane_b32 s3, v1\n    s_nop 1\n    s_mov_b32 s69, s3\n' + z, 1)
    return txt

if __name__ == '__main__':
    kw = eval('dict(%s)' % (sys.argv[2] if len(sys.argv) > 2 else ''))
    open(sys.argv[1], 'w').write(gen(**kw))
```

```python
import sys, os
sys.path.insert(0, 'tools')
from asmlib import Asm

KN = 'gated_mix__sliding_block_cached__swiglu_ffn__decode_kernel'
REF = 'gated_mix__sliding_block_cached__swiglu_ffn__decode.s.ref'
HDR = open(REF).read().split('; Override launch')[0] if os.path.exists(REF) else ''

QB, HB, ST, OB, PB, CAL = 0x10000, 0x30000, 0x50000, 0x60000, 0x100000, 0x180000
WS_SPAN = 0x200000
STAMP = 0x8000000
L_V = 65536
L_GU = L_V + 49152
L_WD, L_WO = 16384, 24576
L_Q = 131072
QS, PS = 320, 576
L_P = L_Q + 1280
L_MISC = L_P + 2304
O_MX = 0
O_PROG, O_CMAX, O_CL, O_KD, O_CO, O_FB, O_FG, O_CC = [32 + 4 * k for k in range(8)]
O_FT, O_TAG, O_G = 64, 68, 72
O_GD, O_R0, O_R1 = 96, 104, 108
L_HA = L_MISC + 256
L_CR = L_Q + 4096
assert L_HA + 256 <= L_CR
L_WQ = L_CR + 4096
LDS_BYTES = L_WQ + 16384
NW = 15
ROLES = [('A', [1]), ('B', [2]), ('L', [0]), ('att', list(range(3, 11))), ('C', [11, 12, 13, 14])]

DOC = '''; ---------------------------------------------------------------------------------------------
; One launch, 256 workgroups (one per CU), 15 waves each.  wg = 8*i + G, G = kv head.
;   wave 0      loader : streams wq tile, gate/up tile, K chunk, V chunk, w_down tile, wo tile into LDS
;   wave 1 (A)  x@wq tile -> partial q to the group, gathers q for (batch, 4 heads)
;   waves 11-14 merge the 16 chunk partials per batch (max/sum rescale), times wo rows (+ FFN rows),
; epoch word at d_ws[0]; stores stay in the XCD L2 only when the whole group reported the same XCD.
; ---------------------------------------------------------------------------------------------'''

def gen(ampall=False, light=False, stamps=False, limit=1 << 22, pol='nt', W=36, Ws=None, Wv=None, We=28, rot=1,
        vph=(6, 8), force_global=False, ktry=6, agap=4, order=('wq', 'gu', 'k', 'v', 'wd', 'wo'), lead=3, thr=64,
        pvpipe=False, cosleep=0, numa=True, warm=True, wpol=None, adel=0, bdel=3, split=None, evenheavy=True, ampsel=None):
    a = Asm()
    fin = stamps or light
    if light: stamps = False
    wpol = pol if wpol is None else wpol
    NG = dict(wq=4, k=16, v=16, gu=4, wd=2, wo=4)
    G0 = {}; n = 0
    for ph in order: G0[ph] = n; n += NG[ph]
    END = n
    assert order.index('gu') < order.index('v') and 1 <= lead <= 4
    DP = [d + ' row_mask:0xf bank_mask:0xf' for d in ('quad_perm:[1,0,3,2]', 'quad_perm:[2,3,0,1]', 'row_half_mirror')]
    uid = [0]

    def stamp(k):
        if stamps or (fin and k == 0): a(f's_memrealtime s[{72+2*k}:{73+2*k}]')
    def guard():
        a(f's_add_u32 s68, s68, 1\ns_cmp_gt_u32 s68, {limit}\ns_cbranch_scc1 L_abort')
    def spin_lds(off, val, tmp, sleep=1, extra=None, cached=False):
        uid[0] += 1; n = uid[0]
        a(f's_branch L_sp{n}c' if cached else f's_branch L_sp{n}b')
        a(f'L_sp{n}:')
        guard()
        if sleep: a(f's_sleep {sleep}')
        a(f'L_sp{n}b:')
        a(f'ds_read_b32 v{tmp}, v14 offset:{off}')
        if extra: a(extra)
        a('s_waitcnt lgkmcnt(0)')
        if cached: a(f'L_sp{n}c:')
        a(f'v_cmp_gt_i32 vcc, {val}, v{tmp}')
        a(f's_cbranch_vccnz L_sp{n}')
    def tagbytes():
        a('s_and_b32 s48, s52, 0xf8\ns_bfe_u32 s49, s52, 0x80008\ns_bfe_u32 s50, s52, 0x80010\ns_lshr_b32 s51, s52, 24')
    def clean_check(base, nload, vor, first=True):
        for u in range(nload):
            r = base + 4 * u
            for e in range(4):
                a(f'v_xor_b32 v{r+e}, s{48+e}, v{r+e}')
            if first and u == 0:
                a(f'v_or3_b32 v{vor}, v{r}, v{r+1}, v{r+2}\nv_or_b32 v{vor}, v{vor}, v{r+3}')
            else:
                a(f'v_or3_b32 v{vor}, v{vor}, v{r}, v{r+1}\nv_or3_b32 v{vor}, v{vor}, v{r+2}, v{r+3}')
    def branch_if_bad(vor, label):
        a(f'v_and_b32 v{vor}, 0xff, v{vor}\nv_cmp_ne_u32 vcc, 0, v{vor}\ns_cbranch_vccnz {label}')
    def slow_path(base, nload, retry):
        a(f's_add_u32 s70, s70, 1\ns_cmp_lt_u32 s70, {ktry}\ns_cbranch_scc1 {retry}')
        a('s_mov_b32 exec_hi, 0\nbuffer_store_dwordx4 v[112:115], v111, s[44:47], s71 offen sc1\ns_mov_b64 exec, -1')
        a('v_mov_b32 v4, 0')
        for u in range(nload):
            r = base + 4 * u
            a(f'v_and_b32 v{r}, -8, v{r}\nv_or3_b32 v4, v4, v{r}, v{r+1}\nv_or3_b32 v4, v4, v{r+2}, v{r+3}')
        branch_if_bad(4, retry)
    def finish():
        a('s_branch L_fin' if fin else 's_endpgm')
    def count(off, rtn=None):
        op = f'ds_add_rtn_u32 v{rtn}, v14, v15' if rtn else 'ds_add_u32 v14, v15'
        a(f's_mov_b64 exec, 1\n{op} offset:{off}\ns_mov_b64 exec, -1')

    def sec_entry():
        stamp(0)
        a('s_load_dwordx16 s[8:23], s[0:1], 0\ns_load_dwordx8 s[24:31], s[0:1], 64\ns_load_dwordx2 s[32:33], s[0:1], 96')
        a('s_cmp_ge_u32 s2, 256\ns_cbranch_scc1 L_exit')
        a('v_lshrrev_b32 v1, 6, v0\nv_and_b32 v0, 63, v0')
        a('s_and_b32 s4, s2, 7\ns_lshr_b32 s5, s2, 3')
        a('v_readfirstlane_b32 s3, v1')
        a('v_lshrrev_b32 v1, 4, v0\nv_and_b32 v2, 15, v0')
        a(f'v_mov_b32 v14, {L_MISC}\nv_mov_b32 v15, 1')
        a('s_mov_b32 s39, 0x20000\ns_mov_b32 s43, 0x20000\ns_mov_b32 s47, 0x20000\ns_mov_b32 s67, 0x20000')
        a(f's_mov_b32 s46, {WS_SPAN}\ns_mov_b32 s68, 0')
        a('; s7 = FFN 64-column block, s34 = workgroups of this group with FFN work, s54 = i&3, s53 = i>>2')
        if evenheavy:
            a('s_mul_i32 s7, s4, 7\ns_add_u32 s7, s7, 1\ns_lshr_b32 s7, s7, 1\ns_lshr_b32 s34, s5, 3\ns_add_u32 s7, s7, s34')
            a('s_bitcmp0_b32 s4, 0\ns_cselect_b32 s34, 32, 24')
        else:
            a('s_min_u32 s7, s4, 4\ns_mul_i32 s34, s4, 3\ns_add_u32 s7, s7, s34\ns_lshr_b32 s34, s5, 3\ns_add_u32 s7, s7, s34')
            a('s_cmp_lt_u32 s4, 4\ns_cselect_b32 s34, 32, 24')
        a('s_and_b32 s54, s5, 3\ns_lshr_b32 s53, s5, 2')
        a('s_cmp_eq_u32 s3, 0\ns_cbranch_scc1 L_loader')
        a('s_cmp_eq_u32 s3, 3\ns_cbranch_scc0 L_rest1')
        a('s_getpc_b64 s[60:61]')
        a('L_pc:')
        a('s_sub_u32 s60, s60, L_pc-L_first\ns_subb_u32 s61, s61, 0')
        a('v_lshlrev_b32 v3, 7, v0\nglobal_load_dword v122, v3, s[60:61]')
        a('v_add_u32 v3, 0x2000, v3\nv_min_u32 v3, L_abort-L_first, v3\ns_mov_b32 exec_hi, 0\nglobal_load_dword v123, v3, s[60:61]\ns_mov_b64 exec, -1')
        a('L_rest1:')
        a('s_waitcnt lgkmcnt(0)')
        a('s_mov_b64 s[44:45], s[32:33]')
        a('s_cmp_gt_u32 s3, 2\ns_cbranch_scc0 L_ab')
        a('s_barrier')
        a('s_cmp_lt_u32 s3, 11\ns_cbranch_scc1 L_att')
        a('s_branch L_c_main')
        a('L_exit:')
        a('s_endpgm')
        a('L_ab:')
        a('s_load_dword s52, s[32:33], 0')
        a('s_setprio 3')
        a('s_mov_b64 s[64:65], s[8:9]\ns_mov_b32 s66, 2048\ns_lshl_b32 s59, s54, 8')
        a('v_bfe_u32 v7, v2, 2, 1\nv_lshlrev_b32 v7, 10, v7\nv_lshl_add_u32 v7, v1, 4, v7\nv_lshlrev_b32 v13, 4, v0')
        for ks in range(4):
            a(f'buffer_load_dwordx4 v[{16+4*ks}:{19+4*ks}], v7, s[64:67], s59 offen offset:{ks*64}')
        a('s_cmp_eq_u32 s3, 1\ns_cbranch_scc1 L_ab1')
        a('s_mov_b64 s[40:41], s[26:27]\ns_mov_b32 s42, 1024')
        a('buffer_load_dwordx4 v[116:119], v13, s[64:67], 0 offen\nbuffer_load_dwordx4 v[120:123], v13, s[64:67], 0 offen offset:1024\nbuffer_load_dwordx4 v[124:127], v13, s[40:43], 0 offen')
        a('L_ab1:')
        a('s_barrier')
        a('s_branch L_ab2')

    def sec_loader(lab='L_loader'):
        nonlocal Ws, We
        a(lab + ':')
        a('s_setprio 2')
        a('v_mov_b32 v8, 0xff800000\nv_cmp_gt_u32 vcc, 4, v0\nv_lshl_add_u32 v3, v0, 2, v14\nv_cndmask_b32 v4, 0, v8, vcc\nds_write_b32 v3, v4')
        a('v_lshrrev_b32 v10, 3, v0\nv_and_b32 v11, 1, v1\nv_lshlrev_b32 v11, 1, v11\nv_and_b32 v12, 7, v0\nv_xor_b32 v11, v11, v12\nv_lshlrev_b32 v11, 4, v11')
        def tile_voff(stride):
            d = 8 * stride - 1024
            a(f'v_mul_u32_u24 v3, {stride}, v10\nv_add_u32 v3, v3, v11\nv_xor_b32 v4, 64, v3\nv_add_u32 v4, {d}, v4\nv_add_u32 v5, {2*d}, v3\nv_add_u32 v6, {2*d}, v4')
        def setup(ph):
            a(f'; ---- {ph}')
            if ph == 'wq':
                tile_voff(8192)
                a('s_lshl_b32 s56, s4, 3\ns_add_u32 s56, s56, s53\ns_lshl_b32 s57, s54, 13\ns_add_u32 s56, s56, s57\ns_lshl_b32 s56, s56, 7')
                return 's[14:15]', 0x400000, L_WQ, 32 * 8192
            if ph == 'gu':
                tile_voff(3584)
                a('s_mul_i32 s56, s54, 3584\ns_add_u32 s56, s56, s7\ns_lshl_b32 s56, s56, 7')
                return None, 1835008, L_GU, 32 * 3584
            if ph == 'k':
                a('s_lshr_b32 s60, s5, 4\ns_lshl_b32 s61, s60, 3\ns_add_u32 s61, s61, s4\ns_lshl_b32 s61, s61, 22')
                a('s_and_b32 s57, s5, 15\ns_lshl_b32 s62, s57, 16\ns_add_u32 s61, s61, s62\ns_add_u32 s61, s61, 0x300000')
                a(f's_mul_i32 s55, s57, {rot*4096}')
                a('v_xor_b32 v3, v1, v2\nv_lshlrev_b32 v3, 4, v3\nv_lshl_add_u32 v3, v1, 8, v3')
                a('v_xor_b32 v4, 64, v3\nv_xor_b32 v5, 0x80, v3\nv_xor_b32 v6, 0xc0, v3')
                return 's[10:11]', 0x4000000, 0, None
            if ph == 'v':
                a('v_lshlrev_b32 v3, 1, v1\nv_xor_b32 v3, v3, v2\nv_lshlrev_b32 v3, 4, v3\nv_lshl_add_u32 v3, v1, 8, v3')
                a('v_mov_b32 v4, v3\nv_xor_b32 v5, 0x80, v3\nv_xor_b32 v6, 0x80, v3')
                return 's[12:13]', 0x4000000, L_V, None
            if ph == 'wd':
                a('v_lshlrev_b32 v3, 10, v1\nv_lshl_add_u32 v3, v2, 4, v3\nv_add_u32 v4, 15360, v3\nv_add_u32 v5, 30720, v3\nv_add_u32 v6, 46080, v3')
                a('s_lshl_b32 s56, s7, 6\ns_and_b32 s57, s53, 1\ns_lshl_b32 s57, s57, 3\ns_add_u32 s56, s56, s57\ns_lshl_b32 s56, s56, 10\ns_lshl_b32 s57, s54, 8\ns_add_u32 s56, s56, s57')
                return 's[24:25]', 1835008, L_WD, 4096
            if ph == 'wo':
                a('v_lshlrev_b32 v3, 12, v1\nv_lshl_add_u32 v3, v2, 4, v3\nv_add_u32 v4, 15360, v3\nv_add_u32 v5, 30720, v3\nv_add_u32 v6, 46080, v3')
                a('s_lshl_b32 s56, s4, 3\ns_add_u32 s56, s56, s53\ns_lshl_b32 s56, s56, 16\ns_lshl_b32 s57, s54, 8\ns_add_u32 s56, s56, s57')
                return 's[16:17]', 0x400000, L_WO, 1024
        Ws = W if Ws is None else Ws
        We = W if We is None else We
        nb = Ws // 4
        known = [0]
        def signal(issued, upto):
            while known[0] < upto:
                known[0] += 1
                a(f'v_mov_b32 v9, {known[0]}\ns_waitcnt vmcnt({4*(issued-known[0])})\nds_write_b32 v14, v9 offset:{O_PROG}')
                if known[0] == G0['v'] + 16: stamp(3)
        first = True; kd_checked = False
        for ph in order:
            ptr, size, lds, gstep = setup(ph)
            a(f's_mov_b32 s38, {size}\ns_mov_b32 m0, {lds}')
            if first: a('s_waitcnt lgkmcnt(0)'); first = False
            if ph == 'gu': a('s_bitcmp0_b32 s5, 2\ns_cselect_b64 s[36:37], s[20:21], s[22:23]')
            else: a(f's_mov_b64 s[36:37], {ptr}')
            if ph in ('gu', 'wd'): a('s_cmp_lt_u32 s5, s34\ns_cselect_b32 s38, s38, 0')
            if lds < L_V and ph != 'k' and not kd_checked:
                spin_lds(O_KD, 8, 12, sleep=0); kd_checked = True
            p = pol if ph in ('k', 'v') else wpol
            win = (We if G0[ph] > G0['v'] else (Wv or W) if ph == 'v' else W) // 4
            g = G0[ph]; gend = g + NG[ph]
            while g < gend:
                free = nb if g < nb else known[0] + win
                waits = g >= free
                e = gend if waits else min(gend, free)
                if ph == 'v' and g < G0['v'] + 12: e = min(e, G0['v'] + 12)
                if waits:
                    signal(g, g - win)
                    a(f'v_mov_b32 v9, {known[0]}')
                uid[0] += 1; lid = uid[0]
                if e - g > 1: a(f'L_ld{lid}:')
                if gstep is None: a('s_and_b32 s55, s55, 0xffff\ns_add_u32 s56, s61, s55')
                if waits: a(f'v_add_u32 v9, 1, v9\ns_waitcnt vmcnt({4*win-4})\nds_write_b32 v14, v9 offset:{O_PROG}')
                for j in range(4):
                    a(f'buffer_load_dwordx4 v{3+j}, s[36:39], s56 offen offset:{j*1024} {p} lds')
                a('s_add_u32 s55, s55, 4096' if gstep is None else f's_add_u32 s56, s56, {gstep}')
                a('s_add_u32 m0, m0, 4096')
                if e - g > 1: a(f's_cmp_lt_u32 m0, {lds + (e-G0[ph])*4096}\ns_cbranch_scc1 L_ld{lid}')
                if waits: known[0] += e - g
                g = e
                if g == nb: a('s_waitcnt lgkmcnt(0)\ns_barrier')
                if ph == 'v' and g == G0['v'] + 12: spin_lds(O_GD, 2, 12, sleep=0)
            if ph == 'k': stamp(1)
            if ph == 'v': stamp(2)
        stamp(4)
        signal(END, END)
        stamp(5)
        a('s_waitcnt lgkmcnt(0)')
        finish()

    def sec_ab():
        a('L_ab2:')
        a('s_cmp_eq_u32 s3, 1')
        a(f's_mov_b32 s55, {L_GU}\ns_cselect_b32 s55, {L_WQ}, s55\ns_cselect_b32 s61, {G0["wq"]+1}, {G0["gu"]+1}')
        a('v_lshrrev_b32 v8, 2, v2\nv_lshl_add_u32 v8, v1, 3, v8\nv_lshlrev_b32 v8, 7, v8')
        a('v_and_b32 v9, 3, v2\nv_lshl_add_u32 v8, v9, 3, v8\nv_add_u32 v8, s55, v8')
        a('v_lshrrev_b32 v9, 3, v2\nv_and_b32 v10, 1, v1\nv_lshl_add_u32 v9, v10, 1, v9')
        a('v_lshl_add_u32 v8, v9, 5, v8')
        a('v_xor_b32 v9, 32, v8\nv_xor_b32 v10, 64, v8\nv_xor_b32 v11, 0x60, v8')
        a('v_mov_b32 v12, 0xffffff00')
        a(f's_lshl_b32 s56, s4, 14\ns_lshl_b32 s57, s54, 11\ns_add_u32 s56, s56, s57\ns_lshl_b32 s57, s53, 8\ns_add_u32 s56, s56, s57\ns_add_u32 s56, s56, {QB}')
        a(f's_lshl_b32 s57, s7, 12\ns_and_b32 s58, s5, 7\ns_lshl_b32 s58, s58, 9\ns_add_u32 s57, s57, s58\ns_add_u32 s57, s57, {HB}')
        a('s_cmp_eq_u32 s3, 1\ns_cselect_b32 s71, s56, s57\ns_cselect_b32 s57, 13, 8')
        a('v_lshlrev_b32 v111, s57, v1\nv_lshl_add_u32 v111, v2, 4, v111')
        a('s_getreg_b32 s60, hwreg(HW_REG_XCC_ID, 0, 3)\ns_mov_b32 s70, 0')
        if force_global: a('s_add_u32 s60, s60, s5\ns_and_b32 s60, s60, 7')
        a('s_waitcnt lgkmcnt(0)')
        a('s_add_u32 s52, s52, 0x01010108')
        tagbytes()
        a('s_or_b32 s48, s48, s60')
        a('s_cmp_eq_u32 s3, 1\ns_cbranch_scc0 L_b_gate')
        a('L_ab_gemv:')
        stamp(1)
        a('v_mov_b32 v5, -1\ns_waitcnt vmcnt(0)')
        for ks in range(4):
            spin_lds(O_PROG, 's61', 5, sleep=0 if ks else 1, cached=True)
            for t in range(4):
                for h in range(2):
                    r = 32 + t * 4 + 2 * h + (ks & 1) * 16
                    a(f'ds_read_b64_tr_b16 v[{r}:{r+1}], v{8+t} offset:{ks*4096+h*512}')
            a('s_add_u32 s61, s61, 1')
            for t in range(4):
                a(f's_waitcnt lgkmcnt({6-2*t})')
                r = 32 + t * 4 + (ks & 1) * 16
                cacc = '0' if ks == 0 else f'v[{92+4*t}:{95+4*t}]'
                a(f'v_mfma_f32_16x16x32_bf16 v[{92+4*t}:{95+4*t}], v[{16+4*ks}:{19+4*ks}], v[{r}:{r+3}], {cacc}')
        stamp(2)
        count(O_GD)
        for t in range(4):
            a(f'v_add_u32 v{112+t}, 0x80, v{92+4*t}')
        for t in range(4):
            a(f'v_and_or_b32 v{112+t}, v{112+t}, v12, s{48+t}')
        a('s_mov_b32 exec_hi, 0\nbuffer_store_dwordx4 v[112:115], v111, s[44:47], s71 offen\ns_mov_b64 exec, -1')
        stamp(3)
        a('s_cmp_eq_u32 s3, 1\ns_cbranch_scc0 L_b_h')
        a('; ---- A: gather q')
        a(f's_lshl_b32 s56, s4, 14\ns_lshr_b32 s57, s5, 4\ns_lshl_b32 s57, s57, 13\ns_add_u32 s56, s56, s57\ns_add_u32 s56, s56, {QB}\ns_add_u32 s57, s56, 4096')
        a(f'v_lshrrev_b32 v3, 1, v1\nv_mul_u32_u24 v3, {QS}, v3\nv_and_b32 v4, 1, v1\nv_lshl_add_u32 v3, v4, 7, v3\nv_lshl_add_u32 v3, v2, 1, v3\nv_add_u32 v3, {L_Q}, v3')
        def qloads(b):
            for u in range(8):
                a(f'buffer_load_dwordx4 v[{b+4*u}:{b+3+4*u}], v13, s[44:47], s{56+u//4} offen offset:{(u%4)*1024} sc1')
        def qsum(b):
            for k in range(0, 8, 2):
                a(f'v_pk_add_f32 v[{b+k}:{b+k+1}], v[{b+k}:{b+k+1}], v[{b+k+8}:{b+k+9}]\nv_pk_add_f32 v[{b+k+16}:{b+k+17}], v[{b+k+16}:{b+k+17}], v[{b+k+24}:{b+k+25}]')
            for k in range(0, 8, 2):
                a(f'v_pk_add_f32 v[{16+k}:{17+k}], v[{b+k}:{b+k+1}], v[{b+k+16}:{b+k+17}]')
        a('v_mov_b32 v6, 2')
        if adel: spin_lds(O_PROG, G0['wq'] + 4 + adel, 5, sleep=1, cached=True)
        if agap:
            qloads(64)
            spin_lds(O_PROG, G0['wq'] + 4 + agap, 5, sleep=1)
            qloads(32)
            a('s_waitcnt vmcnt(8)')
            clean_check(64, 8, 4)
            branch_if_bad(4, 'L_a_chk')
            qsum(64)
            a('s_branch L_a_got')
        a('L_a_poll:')
        guard()
        qloads(32)
        a('L_a_chk:')
        a('s_waitcnt vmcnt(0)')
        clean_check(32, 8, 4)
        branch_if_bad(4, 'L_a_slow')
        a('L_a_ok:')
        qsum(32)
        a('L_a_got:')
        stamp(4)
        for hf in range(2):
            for e in (0, 2):
                r = 16 + 4 * hf + e
                a(f'v_cvt_pk_bf16_f32 v{r}, v{r}, v{r+1}')
                a(f'ds_write_b16 v3, v{r} offset:{hf*2*QS+e*32}\nds_write_b16_d16_hi v3, v{r} offset:{hf*2*QS+e*32+32}')
        a(f'v_mov_b32 v7, s52\nds_write_b64 v14, v[6:7] offset:{O_FT}')
        a('s_waitcnt lgkmcnt(0)')
        stamp(5)
        if numa: a('s_branch L_a_cal')
        else: finish()

    def sec_a_extra():
        a('L_a_slow:')
        slow_path(32, 8, 'L_a_poll')
        a('v_mov_b32 v6, 1\ns_branch L_a_ok')
        if numa:
            a('; ---- A: which of the two result copies is homed next to this XCD (speed only)')
            a('L_a_cal:')
            a(f's_lshr_b32 s56, s2, 6\ns_lshl_b32 s56, s56, 14\ns_and_b32 s57, s2, 63\ns_lshl_b32 s57, s57, 7\ns_add_u32 s56, s56, s57\ns_add_u32 s56, s56, {CAL}\ns_add_u32 s57, s56, 8192')
            a('v_mov_b32 v3, 0\ns_mov_b64 exec, 1\ns_setprio 0')
            spin_lds(O_PROG, END - 4, 5, sleep=8)
            spin_lds(O_R0, 4, 5, sleep=0)
            a('buffer_store_dword v3, v3, s[44:47], s56 offen sc1\nbuffer_store_dword v3, v3, s[44:47], s57 offen sc1')
            a('s_waitcnt vmcnt(1)\ns_memtime s[94:95]\ns_waitcnt vmcnt(0)\ns_memtime s[96:97]\ns_waitcnt lgkmcnt(0)')
            a(f's_sub_u32 s96, s96, s94\ns_cmp_gt_u32 s96, {thr}\ns_cselect_b32 s60, 1, 2\nv_mov_b32 v3, s60\nds_write_b32 v14, v3 offset:{O_R1}\ns_waitcnt lgkmcnt(0)')
            finish()

    def sec_b():
        a('L_b_gate:')
        a(f's_lshl_b32 s56, s7, 12\ns_and_b32 s57, s53, 1\ns_lshl_b32 s57, s57, 7\ns_add_u32 s56, s56, s57\ns_add_u32 s56, s56, {HB}')
        a('v_lshrrev_b32 v13, 3, v0\nv_lshlrev_b32 v13, 8, v13\nv_and_b32 v7, 7, v0\nv_lshl_add_u32 v13, v7, 4, v13')
        a('v_bfe_u32 v108, v0, 3, 1')
        a('v_and_b32 v110, 1, v1\nv_lshlrev_b32 v110, 7, v110\nv_lshl_add_u32 v110, v108, 5, v110\nv_and_b32 v109, 3, v0\nv_lshl_add_u32 v110, v109, 3, v110')
        a(f'v_lshrrev_b32 v109, 1, v1\nv_lshl_add_u32 v110, v109, 6, v110\nv_bfe_u32 v109, v0, 2, 1\nv_lshl_add_u32 v110, v109, 2, v110\nv_add_u32 v110, {L_HA}, v110')
        a('v_mov_b32 v4, 0\nv_mov_b32 v5, 0')
        a('s_waitcnt vmcnt(0)')
        for k in range(4): a(f'v_dot2c_f32_bf16 v4, v{116+k}, v{124+k}')
        for k in range(4): a(f'v_dot2c_f32_bf16 v5, v{120+k}, v{124+k}')
        a('v_permlane32_swap_b32 v4, v5\nv_add_f32 v4, v4, v5')
        a('v_mov_b32 v5, v4\nv_permlane16_swap_b32 v4, v5\nv_add_f32 v4, v4, v5')
        for s in (8, 4, 2, 1): a(f'v_add_f32_dpp v4, v4, v4 row_ror:{s} row_mask:0xf bank_mask:0xf')
        a('v_cvt_pk_bf16_f32 v4, v4, v4\nv_and_b32 v4, 0xffff0000, v4')
        a('v_mul_f32 v4, 0xbfb8aa3b, v4\nv_exp_f32 v4, v4\nv_add_f32 v4, 1.0, v4\nv_rcp_f32 v4, v4')
        a('v_cvt_pk_bf16_f32 v4, v4, v4\nv_and_b32 v4, 0xffff0000, v4')
        a('v_sub_f32 v5, 1.0, v4\nv_cvt_pk_bf16_f32 v5, v5, v5\nv_and_b32 v5, 0xffff0000, v5')
        a('v_lshrrev_b32 v6, 5, v0\nv_lshl_add_u32 v6, v6, 2, v14')
        a(f'ds_write2_b32 v6, v4, v5 offset0:{O_G//4} offset1:{O_G//4+2}')
        a(f'ds_write_b32 v14, v15 offset:{O_FG}')
        a(f'v_lshl_add_u32 v6, v108, 2, v14\nds_read_b32 v109, v6 offset:{O_G+8}')
        a('s_waitcnt lgkmcnt(0)')
        a('s_cmp_lt_u32 s5, s34\ns_cbranch_scc1 L_ab_gemv')
        count(O_GD)
        finish()
        a('L_b_slow:')
        slow_path(32, 2, 'L_b_poll')
        a('s_branch L_b_ok')
        a('L_b_h:')
        if bdel: spin_lds(O_PROG, G0['gu'] + 4 + bdel, 5, sleep=1, cached=True)
        a('L_b_poll:')
        guard()
        a('buffer_load_dwordx4 v[32:35], v13, s[44:47], s56 offen sc1\nbuffer_load_dwordx4 v[36:39], v13, s[44:47], s56 offen offset:2048 sc1')
        a('s_waitcnt vmcnt(0)')
        clean_check(32, 2, 4)
        branch_if_bad(4, 'L_b_slow')
        a('L_b_ok:')
        stamp(4)
        for r in (32, 36): a(f'v_permlane32_swap_b32 v{r}, v{r+1}\nv_permlane32_swap_b32 v{r+2}, v{r+3}')
        for r in (32, 36): a(f'v_add_f32 v{r}, v{r}, v{r+1}\nv_add_f32 v{r+2}, v{r+2}, v{r+3}')
        a('v_permlane16_swap_b32 v32, v34\nv_permlane16_swap_b32 v36, v38')
        a('v_add_f32 v32, v32, v34\nv_add_f32 v36, v36, v38')
        a('v_cvt_pk_bf16_f32 v32, v32, v36\nv_and_b32 v36, 0xffff0000, v32\nv_lshlrev_b32 v32, 16, v32')
        a('v_mul_f32 v33, 0xbfb8aa3b, v32\nv_exp_f32 v33, v33\nv_mul_f32 v36, v36, v109\nv_add_f32 v33, 1.0, v33\nv_rcp_f32 v33, v33\nv_mul_f32 v32, v32, v33')
        a('v_cvt_pk_bf16_f32 v32, v32, v32\nv_and_b32 v32, 0xffff0000, v32\nv_mul_f32 v32, v32, v36')
        a('v_cvt_pk_bf16_f32 v32, v32, v32\nds_write_b32 v110, v32')
        a(f'ds_write_b32 v14, v15 offset:{O_FB}')
        a('s_waitcnt lgkmcnt(0)')
        stamp(5)
        finish()

    def sec_att():
        a('L_att:')
        a('s_sub_u32 s3, s3, 3\ns_setprio 1\ns_lshl_b32 s55, s3, 13')
        a('v_xor_b32 v4, v1, v2\nv_lshlrev_b32 v3, 8, v2\nv_lshl_add_u32 v3, v4, 4, v3\nv_add_u32 v3, s55, v3')
        a('v_xor_b32 v4, 64, v3\nv_xor_b32 v5, 0x80, v3\nv_xor_b32 v6, 0xc0, v3')
        a(f'v_and_b32 v12, 3, v2\nv_mul_u32_u24 v13, {QS}, v12\nv_lshl_add_u32 v13, v1, 4, v13\nv_add_u32 v13, {L_Q}, v13')
        a(f's_lshl_b32 s56, s3, 6\ns_add_u32 s56, s56, {L_P}\nv_mul_u32_u24 v7, {PS}, v12\nv_lshl_add_u32 v7, v1, 3, v7\nv_add_u32 v7, s56, v7')
        a('v_lshl_add_u32 v12, v12, 2, v14')
        a(f'v_lshrrev_b32 v9, 2, v2\nv_mul_u32_u24 v8, {PS}, v9\nv_lshl_add_u32 v8, v1, 4, v8\nv_add_u32 v8, {L_P}, v8')
        a('v_lshl_add_u32 v10, v1, 3, v9\nv_lshlrev_b32 v10, 8, v10\nv_and_b32 v11, 1, v1\nv_lshl_add_u32 v9, v11, 2, v9\nv_xor_b32 v9, s3, v9\nv_lshl_add_u32 v10, v9, 5, v10')
        a(f'v_and_b32 v9, 3, v2\nv_lshl_add_u32 v10, v9, 3, v10\nv_add_u32 v10, {L_V}, v10')
        a('v_lshlrev_b32 v11, 14, v1\nv_lshl_add_u32 v11, v9, 2, v11\nv_lshrrev_b32 v72, 2, v2\nv_lshl_add_u32 v11, v72, 8, v11')
        a('s_and_b32 s57, s5, 7\ns_lshl_b32 s57, s57, 4\ns_bfe_u32 s60, s5, 0x10003\ns_lshl_b32 s60, s60, 10\ns_add_u32 s57, s57, s60\ns_lshr_b32 s60, s5, 4\ns_lshl_b32 s60, s60, 7\ns_add_u32 s57, s57, s60')
        a(f's_lshl_b32 s60, s4, 16\ns_add_u32 s57, s57, s60\ns_lshl_b32 s60, s3, 11\ns_add_u32 s57, s57, s60\ns_add_u32 s57, s57, {OB}')
        a(f's_lshl_b32 s56, s4, 5\ns_add_u32 s56, s56, s5\ns_lshl_b32 s56, s56, 6\ns_add_u32 s56, s56, {ST}')
        a('s_mov_b32 s58, 0x3db504f3\ns_mov_b32 s59, 0x3fb8aa3b')
        a('v_lshlrev_b32 v9, 3, v9\nv_mov_b32 v80, 0xffffff00\nv_lshlrev_b32 v81, 4, v1\nv_lshl_add_u32 v82, v1, 2, v14')
        a('v_mov_b32 v84, 0x3f803f80\nv_mov_b32 v85, v84\nv_mov_b32 v86, v84\nv_mov_b32 v87, v84')
        a(f's_lshl_b32 s61, s3, 1\ns_add_u32 s61, s61, {G0["k"]+2}')
        stamp(1)
        spin_lds(O_PROG, 's61', 72, sleep=2)
        stamp(2)
        for t in range(2):
            for ks in range(4):
                r = 16 + (t * 4 + ks) * 4
                a(f'ds_read_b128 v[{r}:{r+3}], v{3+ks} offset:{t*4096}')
        count(O_KD)
        spin_lds(O_FT, 1, 75, sleep=1, extra=f'ds_read_b32 v73, v14 offset:{O_TAG}')
        stamp(3)
        for ks in range(4): a(f'ds_read_b128 v[{48+4*ks}:{51+4*ks}], v13 offset:{ks*64}')
        a('v_readfirstlane_b32 s6, v75\nv_readfirstlane_b32 s52, v73\nv_and_b32 v73, -8, v73\nv_bfe_u32 v9, v73, v9, 8')
        tagbytes()
        if stamps: a('s_waitcnt lgkmcnt(0)')
        for ks in range(4):
            if not stamps: a(f's_waitcnt lgkmcnt({3-ks})')
            for t in range(2):
                d = 64 + t * 4; kf = 16 + (t * 4 + ks) * 4
                cacc = '0' if ks == 0 else f'v[{d}:{d+3}]'
                a(f'v_mfma_f32_16x16x32_bf16 v[{d}:{d+3}], v[{kf}:{kf+3}], v[{48+4*ks}:{51+4*ks}], {cacc}')
        for t in range(2):
            d = 64 + t * 4
            a(f'v_cvt_pk_bf16_f32 v72, v{d}, v{d+1}\nv_cvt_pk_bf16_f32 v73, v{d+2}, v{d+3}')
            a(f'v_lshlrev_b32 v{d}, 16, v72\nv_and_b32 v{d+1}, 0xffff0000, v72\nv_lshlrev_b32 v{d+2}, 16, v73\nv_and_b32 v{d+3}, 0xffff0000, v73')
            for r in range(4): a(f'v_mul_f32 v{d+r}, s58, v{d+r}')
            a(f'v_cvt_pk_bf16_f32 v72, v{d}, v{d+1}\nv_cvt_pk_bf16_f32 v73, v{d+2}, v{d+3}')
            a(f'v_lshlrev_b32 v{d}, 16, v72\nv_and_b32 v{d+1}, 0xffff0000, v72\nv_lshlrev_b32 v{d+2}, 16, v73\nv_and_b32 v{d+3}, 0xffff0000, v73')
        a('v_max3_f32 v74, v64, v65, v66\nv_max3_f32 v74, v74, v67, v68\nv_max3_f32 v74, v74, v69, v70\nv_max_f32 v74, v74, v71')
        a('s_mov_b32 exec_lo, 0x000f000f\ns_mov_b32 exec_hi, 0x000f000f')
        a(f'ds_max_f32 v12, v74 offset:{O_MX}')
        count(O_CMAX)
        spin_lds(O_CMAX, 8, 72, sleep=0, extra=f'ds_read_b32 v74, v12 offset:{O_MX}')
        a('v_mul_f32 v74, 0xbfb8aa3b, v74')
        for r in range(8): a(f'v_fma_f32 v{64+r}, v{64+r}, s59, v74')
        for r in range(8): a(f'v_exp_f32 v{64+r}, v{64+r}')
        a('v_cvt_pk_bf16_f32 v76, v64, v65\nv_cvt_pk_bf16_f32 v77, v66, v67\nv_cvt_pk_bf16_f32 v78, v68, v69\nv_cvt_pk_bf16_f32 v79, v70, v71')
        a('s_mov_b32 exec_lo, 0x000f000f\ns_mov_b32 exec_hi, 0x000f000f')
        a('ds_write2_b64 v7, v[76:77], v[78:79] offset0:0 offset1:4')
        count(O_CL)
        spin_lds(O_CL, 8, 72, sleep=0)
        stamp(4)
        for ks in range(8): a(f'ds_read_b128 v[{16+4*ks}:{19+4*ks}], v8 offset:{ks*64}')
        a(f'ds_read_b32 v72, v14 offset:{O_PROG}\nds_read_b32 v73, v82 offset:{O_MX}')
        a('s_waitcnt lgkmcnt(0)')
        a('s_cmp_eq_u32 s3, 0\ns_cbranch_scc0 L_att_pv')
        for ks in range(8):
            cacc = '0' if ks == 0 else 'v[68:71]'
            a(f'v_mfma_f32_16x16x32_bf16 v[68:71], v[{16+4*ks}:{19+4*ks}], v[84:87], {cacc}')
        a('v_and_or_b32 v76, v73, v80, s48\nv_mov_b32 v78, s50\nv_mov_b32 v79, s51\nv_and_or_b32 v77, v68, v80, s49')
        a('s_mov_b32 exec_lo, 0x00010001\ns_mov_b32 exec_hi, 0x00010001')
        a('s_cmp_eq_u32 s6, 2\ns_cbranch_scc1 L_att_sl')
        a('buffer_store_dwordx4 v[76:79], v81, s[44:47], s56 offen sc1\ns_branch L_att_sd')
        a('L_att_sl:')
        a('buffer_store_dwordx4 v[76:79], v81, s[44:47], s56 offen')
        a('L_att_sd:')
        a('s_mov_b64 exec, -1')
        a('L_att_pv:')
        def pvmm(ks):
            r = 88 + 4 * ks
            cacc = '0' if ks == 0 else 'v[64:67]'
            a(f'v_mfma_f32_16x16x32_bf16 v[64:67], v[{16+4*ks}:{19+4*ks}], v[{r}:{r+3}], {cacc}')
        ks0 = 0; pend = []
        for ks1 in vph:
            spin_lds(O_PROG, G0['v'] + 2 * ks1, 72, sleep=0, cached=True)
            for ks in range(ks0, ks1):
                r = 88 + 4 * ks
                a(f'ds_read_b64_tr_b16 v[{r}:{r+1}], v10 offset:{ks*8192}\nds_read_b64_tr_b16 v[{r+2}:{r+3}], v10 offset:{ks*8192+1024}')
            new = list(range(ks0, ks1))
            todo = pend if pvpipe else new
            for ks in todo:
                a(f's_waitcnt lgkmcnt({2*(ks1-1-ks)})')
                pvmm(ks)
            pend = new if pvpipe else []
            ks0 = ks1
        for ks in pend:
            a(f's_waitcnt lgkmcnt({2*(7-ks)})')
            pvmm(ks)
        count(O_CO)
        a('s_cmp_eq_u32 s6, 2')
        a('v_and_or_b32 v64, v64, v80, v9')
        a('s_cbranch_scc0 L_att_g')
        a('buffer_store_dword v64, v11, s[44:47], s57 offen')
        stamp(5)
        finish()
        a('L_att_g:')
        a('buffer_store_dword v64, v11, s[44:47], s57 offen sc1')
        stamp(5)
        finish()

    def sec_c():
        sh = 14 if numa else 13
        def woread(n):
            a(f'ds_read_b128 v[{16+4*n}:{19+4*n}], v98 offset:{L_WO+n*4096}')
        def oloads():
            for u in range(2):
                a(f'buffer_load_dwordx4 v[{64+4*u}:{67+4*u}], v4, s[44:47], s62 offen offset:{u*1024} sc1')
        def sload():
            a('buffer_load_dwordx4 v[72:75], v6, s[44:47], s61 offen sc1')
        a('L_c_main:')
        a('s_sub_u32 s3, s3, 11')
        a('s_mov_b64 s[64:65], s[28:29]\ns_mov_b32 s66, 2048')
        a('s_lshl_b32 s55, s53, 2\ns_add_u32 s55, s55, s3')
        a(f's_lshl_b32 s61, s4, 11\ns_add_u32 s61, s61, {ST}')
        a(f's_lshl_b32 s62, s4, 16\ns_lshl_b32 s60, s55, 11\ns_add_u32 s62, s62, s60\ns_add_u32 s62, s62, {OB}')
        if warm:
            a('; bring the mailbox lines into L2 early')
            a('v_lshlrev_b32 v3, 7, v0\ns_sub_u32 s60, s61, 2048\nv_mov_b32 v4, s62\nv_mov_b32 v5, s60\nv_cmp_gt_u32 vcc, 16, v0\nv_cndmask_b32 v4, v5, v4, vcc\nv_add_u32 v3, v3, v4')
            a('s_mov_b32 exec_hi, 0\nbuffer_load_dword v122, v3, s[44:47], 0 offen sc1\ns_mov_b64 exec, -1')
        a('s_lshr_b32 s60, s53, 1\ns_lshl_b32 s60, s60, 4\ns_add_u32 s61, s61, s60')
        a('v_and_b32 v12, 1, v0\nv_lshlrev_b32 v12, 4, v12\nv_mov_b32 v13, 0xffff\nv_lshlrev_b32 v12, v12, v13\nv_bfe_u32 v13, v0, 1, 2')
        for k in range(4): a(f'v_cmp_eq_u32 vcc, {k}, v13\nv_cndmask_b32 v{8+k}, 0, v12, vcc')
        a('v_lshrrev_b32 v4, 3, v0\nv_and_b32 v5, 7, v0\nv_bfe_u32 v12, v0, 3, 1\nv_and_b32 v13, 1, v1\nv_lshlrev_b32 v6, 6, v5\nv_lshl_add_u32 v6, v13, 9, v6\nv_lshl_add_u32 v6, v12, 10, v6')
        a(f'v_lshlrev_b32 v126, {sh}, v4\nv_lshl_add_u32 v126, v5, 4, v126')
        a(f's_lshl_b32 s60, s3, 6\ns_add_u32 s60, s60, {L_HA}\nv_lshlrev_b32 v3, 5, v12\nv_lshl_add_u32 v3, v1, 3, v3\nv_add_u32 v3, s60, v3')
        a('v_lshl_add_u32 v72, v12, 2, v14')
        a('v_mov_b32 v124, 0xffffff00\nv_lshlrev_b32 v4, 4, v0\nv_lshlrev_b32 v125, 7, v0')
        a(f's_lshl_b32 s63, s3, 10\nv_add_u32 v98, s63, v4\nv_add_u32 v13, {L_CR}, v98\nv_xor_b32 v7, 0x400, v13\nv_xor_b32 v12, 0x800, v13\nv_xor_b32 v99, 0xc00, v13')
        a('v_and_b32 v2, 1, v1\nv_lshlrev_b32 v2, 2, v2\nv_and_b32 v1, 2, v1\nv_add_u32 v2, v2, v1')
        a(f's_lshl_b32 s59, s4, 3\ns_add_u32 s59, s59, s53\ns_lshl_b32 s58, s54, {sh+3}\ns_add_u32 s58, s58, {PB}')
        a('s_lshl_b32 s57, s59, 7\ns_add_u32 s57, s57, s58')
        a(f's_lshl_b32 s60, s4, {sh}\ns_add_u32 s58, s58, s60\ns_lshl_b32 s60, s53, 4\ns_add_u32 s58, s58, s60')
        a('s_lshr_b32 s60, s59, 5\ns_lshl_b32 s60, s60, 10\ns_lshl_b32 s63, s54, 8\ns_add_u32 s60, s60, s63\ns_and_b32 s63, s59, 15\ns_lshl_b32 s63, s63, 4\ns_add_u32 s60, s60, s63\ns_bfe_u32 s63, s59, 0x10004\ns_lshl_b32 s63, s63, 3\ns_add_u32 s60, s60, s63')
        if numa: a('s_add_u32 s56, s57, 8192\ns_add_u32 s55, s58, 8192')
        spin_lds(O_FG, 1, 127, sleep=8, extra=f'ds_read_b32 v123, v72 offset:{O_G}')
        a('v_mov_b32 v112, 0\nv_mov_b32 v113, 0')
        a('s_cmp_ge_u32 s5, s34\ns_cbranch_scc1 L_c_noh')
        spin_lds(O_FB, 1, 127, sleep=4, extra='ds_read_b64 v[112:113], v3')
        a('L_c_noh:')
        for n in range(2):
            for k in range(4): a(f'v_and_b32 v{40+4*n+k}, v{112+n}, v{8+k}')
        spin_lds(O_CL, 8, 127, sleep=4, extra=f'ds_read_b32 v97, v14 offset:{O_TAG}')
        a('v_readfirstlane_b32 s52, v97')
        tagbytes()
        a('s_setprio 3')
        stamp(1)
        spin_lds(O_CO, 8, 127, sleep=cosleep, extra=f'ds_read_b32 v114, v14 offset:{O_PROG}')
        spin_lds(O_PROG, END - lead, 114, sleep=0, cached=True)
        stamp(3)
        oloads(); sload()
        if stamps: a('s_waitcnt lgkmcnt(0)')
        for n in range(2): a(f'ds_read_b128 v[{32+4*n}:{35+4*n}], v98 offset:{L_WD+n*4096}')
        nearly = 4 - lead
        for n in range(nearly): woread(n)
        for n in range(2):
            a(f's_waitcnt lgkmcnt({nearly+1-n})')
            cacc = '0' if n == 0 else 'v[100:103]'
            a(f'v_mfma_f32_16x16x32_bf16 v[100:103], v[{40+4*n}:{43+4*n}], v[{32+4*n}:{35+4*n}], {cacc}')
        def xcheck(pend):
            for u in range(2):
                a(f's_waitcnt vmcnt({pend+1-u})')
                clean_check(64 + 4 * u, 1, 5, first=(u == 0))
            a('v_and_b32 v5, 0xff, v5\nv_cmp_ne_u32 vcc, 0, v5')
        xcheck(1)
        a('s_waitcnt vmcnt(0)\ns_mov_b64 s[70:71], vcc\ns_cbranch_vccz L_c_schk')
        a('s_mov_b64 exec, vcc')
        oloads()
        a('s_mov_b64 exec, -1\ns_branch L_c_schk')
        a('L_c_late:')
        spin_lds(O_PROG, END, 127, sleep=0)
        for n in range(nearly, 4): woread(n)
        a('s_waitcnt lgkmcnt(0)\ns_branch L_c_mm')
        a('L_c_stat:')
        guard()
        a('s_sleep 2')
        sload()
        a('s_waitcnt vmcnt(0)')
        a('L_c_schk:')
        clean_check(72, 1, 76)
        a(f'v_max_f32_dpp v96, v72, v72 {DP[0]}')
        branch_if_bad(76, 'L_c_stat')
        a(f'v_max_f32_dpp v96, v96, v96 {DP[1]}')
        a(f'ds_read_b32 v127, v14 offset:{O_PROG}')
        late = list(range(nearly, 4))
        def fill():
            if late: woread(late.pop(0))
        fill()
        a(f'v_max_f32_dpp v96, v96, v96 {DP[2]}')
        a('v_mov_b32 v97, v96')
        fill(); fill()
        a('v_permlane16_swap_b32 v96, v97\nv_max_f32 v96, v96, v97')
        a('v_sub_f32 v96, v72, v96\nv_mul_f32 v96, 0x3fb8aa3b, v96\nv_exp_f32 v96, v96')
        fill()
        a('v_mul_f32 v112, v96, v73\nv_mul_f32 v96, v96, v123\nv_mov_b32 v97, v96')
        a(f'v_add_f32_dpp v112, v112, v112 {DP[0]}')
        a('s_cmp_eq_u64 s[70:71], 0')
        a('v_permlane16_swap_b32 v96, v97')
        a(f'v_add_f32_dpp v112, v112, v112 {DP[1]}')
        stamp(2)
        a('s_cbranch_scc1 L_c_ook')
        a('s_mov_b64 exec, s[70:71]\ns_branch L_c_oloop')
        a('L_c_oy:')
        a('s_mov_b64 exec, vcc')
        guard()
        oloads()
        a('L_c_oloop:')
        xcheck(0)
        a('s_cbranch_vccnz L_c_oy')
        a('s_mov_b64 exec, -1')
        a('L_c_ook:')
        stamp(4)
        for e in range(2): a(f'v_mul_f32 v{104+e}, v96, v{64+e}')
        a(f'v_add_f32_dpp v112, v112, v112 {DP[2]}')
        for e in range(2, 4): a(f'v_mul_f32 v{104+e}, v96, v{64+e}')
        a('v_mov_b32 v113, v112')
        for e in range(4): a(f'v_fmac_f32 v{104+e}, v97, v{68+e}')
        a('v_permlane16_swap_b32 v112, v113')
        for k, d in enumerate(DP):
            for e in range(4): a(f'v_add_f32_dpp v{104+e}, v{104+e}, v{104+e} {d}')
            if k == 0: a('v_add_f32 v112, v112, v113')
            if k == 1: a('v_rcp_f32 v112, v112')
        for e in range(4): a(f'v_mul_f32 v{104+e}, v{104+e}, v112')
        if numa: count(O_R0)
        for e in range(4): a(f'v_cvt_pk_bf16_f32 v{104+e}, v{104+e}, v{104+e}')
        def ands(n):
            d = 116 + 4 * (n & 1)
            for k in range(4): a(f'v_and_b32 v{d+k}, v{104+n}, v{8+k}')
        ands(0)
        a(f's_waitcnt lgkmcnt({1 if numa and not stamps else 0})')
        a(f'v_cmp_gt_i32 vcc, {END}, v127\ns_cbranch_vccnz L_c_late')
        a('L_c_mm:')
        for n in range(4):
            if n < 3: ands(n + 1)
            d = 116 + 4 * (n & 1)
            a(f'v_mfma_f32_16x16x32_bf16 v[100:103], v[{d}:{d+3}], v[{16+4*n}:{19+4*n}], v[100:103]')
        a('ds_write_b128 v13, v[100:103]')
        count(O_CC, rtn=127)
        a('ds_read_b128 v[104:107], v7\nds_read_b128 v[108:111], v12\nds_read_b128 v[112:115], v99')
        a('s_waitcnt lgkmcnt(2)')
        a('v_readfirstlane_b32 s63, v127')
        a('v_pk_add_f32 v[104:105], v[104:105], v[100:101]\nv_pk_add_f32 v[106:107], v[106:107], v[102:103]')
        a('s_cmp_eq_u32 s63, 3\ns_cbranch_scc0 L_c_end')
        a('s_waitcnt lgkmcnt(0)')
        a('v_pk_add_f32 v[108:109], v[108:109], v[112:113]\nv_pk_add_f32 v[110:111], v[110:111], v[114:115]')
        a('v_pk_add_f32 v[104:105], v[104:105], v[108:109]\nv_pk_add_f32 v[106:107], v[106:107], v[110:111]')
        for k in range(4): a(f'v_and_or_b32 v{104+k}, v{104+k}, v124, s{48+k}')
        a('buffer_store_dwordx4 v[104:107], v126, s[44:47], s57 offen sc1')
        if numa:
            a('buffer_store_dwordx4 v[104:107], v126, s[44:47], s56 offen sc1')
            spin_lds(O_R1, 1, 108, sleep=1)
            a('v_cmp_eq_u32 vcc, 1, v108\ns_cmp_lg_u64 vcc, 0\ns_cselect_b32 s58, s58, s55')
        stamp(5)
        a('s_waitcnt vmcnt(0)\ns_branch L_c_fp1')
        a('L_c_fpoll:')
        a('s_mov_b64 exec, vcc')
        guard()
        a('L_c_fp1:')
        a('buffer_load_dwordx4 v[64:67], v125, s[44:47], s58 offen sc1')
        a('s_waitcnt vmcnt(0)')
        clean_check(64, 1, 5)
        branch_if_bad(5, 'L_c_fpoll')
        a('s_mov_b64 exec, -1')
        stamp(6)
        a('v_permlane32_swap_b32 v64, v65\nv_permlane32_swap_b32 v66, v67\nv_add_f32 v64, v64, v65\nv_add_f32 v66, v66, v67')
        a('v_permlane16_swap_b32 v64, v66\nv_add_f32 v64, v64, v66')
        for s in (8, 4, 2, 1): a(f'v_add_f32_dpp v64, v64, v64 row_ror:{s} row_mask:0xf bank_mask:0xf')
        a('v_cvt_pk_bf16_f32 v64, v64, v64')
        a('s_mov_b32 exec_lo, 0x00010001\ns_mov_b32 exec_hi, 0x00010001')
        a('buffer_store_short v64, v2, s[64:67], s60 offen')
        a('s_cmp_eq_u32 s2, 0\ns_cbranch_scc0 L_c_end')
        a('; every workgroup has used the tag by now: it becomes the next launch\'s epoch')
        a('s_mov_b64 exec, 1\nv_mov_b32 v4, s52\nv_mov_b32 v5, 0\nbuffer_store_dword v4, v5, s[44:47], 0 offen')
        a('L_c_end:')
        stamp(7)

    def sec_fin():
        a('L_fin:')
        a('s_mov_b64 exec, -1\ns_waitcnt lgkmcnt(0) vmcnt(0)')
        a('s_memrealtime s[90:91]\ns_getreg_b32 s92, hwreg(HW_REG_XCC_ID)\ns_waitcnt lgkmcnt(0)')
        if not ampall:
            for k in range(11): a(f'v_writelane_b32 v4, s{72+2*k}, {k}')
            a('v_writelane_b32 v4, s68, 11\ns_getreg_b32 s93, hwreg(HW_REG_HW_ID)\nv_writelane_b32 v4, s93, 12')
            a(f's_mul_i32 s60, s2, {NW}\ns_add_u32 s60, s60, s69\ns_lshl_b32 s60, s60, 6\ns_add_u32 s60, s60, {STAMP}')
            a('v_lshlrev_b32 v3, 2, v0\nv_add_u32 v3, s60, v3\ns_mov_b64 exec, 0xffff\nglobal_store_dword v3, v4, s[32:33]')
        else:
            a(f's_cmp_eq_u32 s69, 0\ns_cbranch_scc0 L_am1\ns_lshl_b32 s60, s2, 2\ns_add_u32 s60, s60, {STAMP}\nv_mov_b32 v3, s60\nv_mov_b32 v5, s72\ns_mov_b64 exec, 1\nglobal_store_dword v3, v5, s[32:33] sc1\ns_endpgm')
            a('L_am1:')
            a('s_cmp_eq_u32 s2, 0\ns_cbranch_scc0 L_abort\ns_cmp_ge_u32 s69, 11\ns_cbranch_scc0 L_abort')
            a(f's_sleep 100\nv_lshlrev_b32 v3, 4, v0\nv_add_u32 v3, {STAMP}, v3\nglobal_load_dwordx4 v[8:11], v3, s[32:33] sc1\ns_waitcnt vmcnt(0)')
            a('v_subrev_u32 v8, s72, v8\nv_subrev_u32 v9, s72, v9\nv_subrev_u32 v10, s72, v10\nv_subrev_u32 v11, s72, v11\nv_min3_i32 v8, v8, v9, v10\nv_min_i32 v8, v8, v11\nv_max_i32 v8, 0xfffffe00, v8')
            a('s_mov_b32 s61, 0\ns_mov_b32 s62, 0\nL_am2:\ns_nop 4\nv_readlane_b32 s63, v8, s62\ns_nop 4\ns_min_i32 s61, s61, s63\ns_add_u32 s62, s62, 1\ns_cmp_lt_u32 s62, 64\ns_cbranch_scc1 L_am2')
            if ampsel == 'xcc': a('s_and_b32 s60, s92, 7\ns_mul_i32 s60, s60, 100\ns_add_u32 s90, s72, s60\ns_add_u32 s90, s90, s61')
            elif ampsel is not None:
                a(f'v_mov_b32 v3, {STAMP+4*ampsel}\nglobal_load_dword v9, v3, s[32:33] sc1\ns_waitcnt vmcnt(0)\nv_readfirstlane_b32 s60, v9\ns_nop 4\ns_sub_u32 s60, s60, s72\ns_sub_u32 s60, s60, s61\ns_mul_i32 s60, s60, 10\ns_add_u32 s90, s72, s60\ns_add_u32 s90, s90, s61')
            a('s_sub_u32 s60, s90, s72\ns_sub_u32 s60, s60, s61\ns_mul_i32 s60, s60, 10\ns_min_u32 s60, s60, 100000\ns_add_u32 s60, s60, 2000\ns_add_u32 s60, s60, s61')
            a('L_am3:\ns_memrealtime s[62:63]\ns_waitcnt lgkmcnt(0)\ns_sub_u32 s62, s62, s72\ns_cmp_lt_u32 s62, s60\ns_cbranch_scc1 L_am3')

    a.raw(HDR.rstrip('\n'))
    a.raw(f'; @launch grid=(256,1,1) block=({NW*64},1,1) lds={LDS_BYTES}')
    a.raw(DOC)
    a.raw('.amdgcn_target "amdgcn-amd-amdhsa--gfx950"')
    a.raw('.text\n.p2align 12')
    a('L_first:')
    sec_att(); sec_b(); sec_a_extra()
    a.raw('.fill (0xd00 - (. - L_first)) / 4, 4, 0xbf810000')
    a.raw(f'.globl {KN}\n.p2align 8\n.type {KN},@function\n{KN}:')
    a.flush_hist()
    if split:
        sec_entry()
        a('L_loader:')
        a(f's_getreg_b32 s60, hwreg(HW_REG_XCC_ID, 0, 3)\ns_bitcmp1_b32 {split[0]}, s60\ns_cbranch_scc1 L_loader2')
        Ws = 36
        W, Wv = split[1], split[2]
        sec_loader('L_loader1')
        sec_ab()
        a.raw('.p2align 12')
        W, Wv = split[3], split[4]
        sec_loader('L_loader2')
    else:
        sec_entry(); sec_loader(); sec_ab()
    a.raw('.p2align 12')
    sec_c()
    if fin: sec_fin()
    a('L_abort:')
    a('s_endpgm')
    a.raw('.section .rodata,"a"\n.p2align 6')
    a.raw(f'.amdhsa_kernel {KN}')
    a.raw('  .amdhsa_next_free_vgpr 128\n  .amdhsa_next_free_sgpr 102\n  .amdhsa_accum_offset 128\n  .amdhsa_group_segment_fixed_size 0\n  .amdhsa_kernarg_size 104')
    a.raw('  .amdhsa_user_sgpr_count 2\n  .amdhsa_user_sgpr_kernarg_segment_ptr 1\n  .amdhsa_system_sgpr_workgroup_id_x 1\n.end_amdhsa_kernel')
    txt = a.text()
    if fin:
        z = ''.join(f'    s_mov_b32 s{74+2*k}, 0\n' for k in range(8)) if stamps else ''
        txt = txt.replace('    v_readfirstlane_b32 s3, v1\n', '    v_readfirstlane_b32 s3, v1\n    s_nop 1\n    s_mov_b32 s69, s3\n' + z, 1)
    return txt

if __name__ == '__main__':
    kw = eval('dict(%s)' % (sys.argv[2] if len(sys.argv) > 2 else ''))
    open(sys.argv[1], 'w').write(gen(**kw))
```

```python
import sys, os
sys.path.insert(0, 'tools')
from asmlib import Asm

KN = 'gated_mix__sliding_block_cached__swiglu_ffn__decode_kernel'
REF = 'gated_mix__sliding_block_cached__swiglu_ffn__decode.s.ref'
HDR = open(REF).read().split('; Override launch')[0] if os.path.exists(REF) else ''

QB, HB, ST, OB, PB, CAL = 0x10000, 0x30000, 0x50000, 0x60000, 0x100000, 0x180000
WS_SPAN = 0x200000
STAMP = 0x8000000
L_V = 65536
L_GU = L_V + 49152
L_WD, L_WO = 16384, 24576
L_Q = 131072
QS, PS = 320, 576
L_P = L_Q + 1280
L_MISC = L_P + 2304
O_MX = 0
O_PROG, O_CMAX, O_CL, O_KD, O_CO, O_FB, O_FG, O_CC = [32 + 4 * k for k in range(8)]
O_FT, O_TAG, O_G = 64, 68, 72
O_GD, O_R0, O_R1 = 96, 104, 108
L_HA = L_MISC + 256
L_CR = L_Q + 4096
assert L_HA + 256 <= L_CR
L_WQ = L_CR + 4096
LDS_BYTES = L_WQ + 16384
NW = 15
ROLES = [('A', [1]), ('B', [2]), ('L', [0]), ('att', list(range(3, 11))), ('C', [11, 12, 13, 14])]

DOC = '''; ---------------------------------------------------------------------------------------------
; One launch, 256 workgroups (one per CU), 15 waves each.  wg = 8*i + G, G = kv head.
;   wave 0      loader : streams wq tile, gate/up tile, K chunk, V chunk, w_down tile, wo tile into LDS
;   wave 1 (A)  x@wq tile -> partial q to the group, gathers q for (batch, 4 heads)
;   waves 11-14 merge the 16 chunk partials per batch (max/sum rescale), times wo rows (+ FFN rows),
; epoch word at d_ws[0]; stores stay in the XCD L2 only when the whole group reported the same XCD.
; ---------------------------------------------------------------------------------------------'''

def gen(ampall=False, light=False, stamps=False, limit=1 << 22, pol='nt', W=36, Ws=None, Wv=None, We=28, rot=1,
        vph=(6, 8), force_global=False, ktry=6, agap=4, order=('wq', 'gu', 'k', 'v', 'wd', 'wo'), lead=3, thr=64,
        pvpipe=False, cosleep=0, numa=True, warm=True, wpol=None, adel=0, bdel=3, split=None, evenheavy=True, ampsel=None):
    a = Asm()
    fin = stamps or light
    if light: stamps = False
    wpol = pol if wpol is None else wpol
    NG = dict(wq=4, k=16, v=16, gu=4, wd=2, wo=4)
    G0 = {}; n = 0
    for ph in order: G0[ph] = n; n += NG[ph]
    END = n
    assert order.index('gu') < order.index('v') and 1 <= lead <= 4
    DP = [d + ' row_mask:0xf bank_mask:0xf' for d in ('quad_perm:[1,0,3,2]', 'quad_perm:[2,3,0,1]', 'row_half_mirror')]
    uid = [0]

    def stamp(k):
        if stamps or (fin and k == 0): a(f's_memrealtime s[{72+2*k}:{73+2*k}]')
    def guard():
        a(f's_add_u32 s68, s68, 1\ns_cmp_gt_u32 s68, {limit}\ns_cbranch_scc1 L_abort')
    def spin_lds(off, val, tmp, sleep=1, extra=None, cached=False):
        uid[0] += 1; n = uid[0]
        a(f's_branch L_sp{n}c' if cached else f's_branch L_sp{n}b')
        a(f'L_sp{n}:')
        guard()
        if sleep: a(f's_sleep {sleep}')
        a(f'L_sp{n}b:')
        a(f'ds_read_b32 v{tmp}, v14 offset:{off}')
        if extra: a(extra)
        a('s_waitcnt lgkmcnt(0)')
        if cached: a(f'L_sp{n}c:')
        a(f'v_cmp_gt_i32 vcc, {val}, v{tmp}')
        a(f's_cbranch_vccnz L_sp{n}')
    def tagbytes():
        a('s_and_b32 s48, s52, 0xf8\ns_bfe_u32 s49, s52, 0x80008\ns_bfe_u32 s50, s52, 0x80010\ns_lshr_b32 s51, s52, 24')
    def tagwords():
        a('s_and_b32 s48, s52, 0xfff\ns_bfe_u32 s49, s52, 0xc0008\ns_bfe_u32 s50, s52, 0xc0010\ns_and_b32 s51, s52, 15\ns_lshl_b32 s51, s51, 8\ns_lshr_b32 s35, s52, 24\ns_or_b32 s51, s51, s35')
    def clean_check(base, nload, vor, first=True):
        for u in range(nload):
            r = base + 4 * u
            for e in range(4):
                a(f'v_xor_b32 v{r+e}, s{48+e}, v{r+e}')
            if first and u == 0:
                a(f'v_or3_b32 v{vor}, v{r}, v{r+1}, v{r+2}\nv_or_b32 v{vor}, v{vor}, v{r+3}')
            else:
                a(f'v_or3_b32 v{vor}, v{vor}, v{r}, v{r+1}\nv_or3_b32 v{vor}, v{vor}, v{r+2}, v{r+3}')
    def branch_if_bad(vor, label, m='0xff'):
        a(f'v_and_b32 v{vor}, {m}, v{vor}\nv_cmp_ne_u32 vcc, 0, v{vor}\ns_cbranch_vccnz {label}')
    def slow_path(base, nload, retry):
        a(f's_add_u32 s70, s70, 1\ns_cmp_lt_u32 s70, {ktry}\ns_cbranch_scc1 {retry}')
        a('s_mov_b32 exec_hi, 0\nbuffer_store_dwordx4 v[112:115], v111, s[44:47], s71 offen sc1\ns_mov_b64 exec, -1')
        a('v_mov_b32 v4, 0')
        for u in range(nload):
            r = base + 4 * u
            a(f'v_and_b32 v{r}, -8, v{r}\nv_or3_b32 v4, v4, v{r}, v{r+1}\nv_or3_b32 v4, v4, v{r+2}, v{r+3}')
        branch_if_bad(4, retry)
    def finish():
        a('s_branch L_fin' if fin else 's_endpgm')
    def count(off, rtn=None):
        op = f'ds_add_rtn_u32 v{rtn}, v14, v15' if rtn else 'ds_add_u32 v14, v15'
        a(f's_mov_b64 exec, 1\n{op} offset:{off}\ns_mov_b64 exec, -1')

    def sec_entry():
        stamp(0)
        a('s_load_dwordx16 s[8:23], s[0:1], 0\ns_load_dwordx8 s[24:31], s[0:1], 64\ns_load_dwordx2 s[32:33], s[0:1], 96')
        a('s_cmp_ge_u32 s2, 256\ns_cbranch_scc1 L_exit')
        a('v_lshrrev_b32 v1, 6, v0\nv_and_b32 v0, 63, v0')
        a('s_and_b32 s4, s2, 7\ns_lshr_b32 s5, s2, 3')
        a('v_readfirstlane_b32 s3, v1')
        a('v_lshrrev_b32 v1, 4, v0\nv_and_b32 v2, 15, v0')
        a(f'v_mov_b32 v14, {L_MISC}\nv_mov_b32 v15, 1')
        a('s_mov_b32 s39, 0x20000\ns_mov_b32 s43, 0x20000\ns_mov_b32 s47, 0x20000\ns_mov_b32 s67, 0x20000')
        a(f's_mov_b32 s46, {WS_SPAN}\ns_mov_b32 s68, 0')
        a('; s7 = FFN 64-column block, s34 = workgroups of this group with FFN work, s54 = i&3, s53 = i>>2')
        if evenheavy:
            a('s_mul_i32 s7, s4, 7\ns_add_u32 s7, s7, 1\ns_lshr_b32 s7, s7, 1\ns_lshr_b32 s34, s5, 3\ns_add_u32 s7, s7, s34')
            a('s_bitcmp0_b32 s4, 0\ns_cselect_b32 s34, 32, 24')
        else:
            a('s_min_u32 s7, s4, 4\ns_mul_i32 s34, s4, 3\ns_add_u32 s7, s7, s34\ns_lshr_b32 s34, s5, 3\ns_add_u32 s7, s7, s34')
            a('s_cmp_lt_u32 s4, 4\ns_cselect_b32 s34, 32, 24')
        a('s_and_b32 s54, s5, 3\ns_lshr_b32 s53, s5, 2')
        a('s_cmp_eq_u32 s3, 0\ns_cbranch_scc1 L_loader')
        a('s_cmp_eq_u32 s3, 3\ns_cbranch_scc0 L_rest1')
        a('s_getpc_b64 s[60:61]')
        a('L_pc:')
        a('s_sub_u32 s60, s60, L_pc-L_first\ns_subb_u32 s61, s61, 0')
        a('v_lshlrev_b32 v3, 7, v0\nglobal_load_dword v122, v3, s[60:61]')
        a('v_add_u32 v3, 0x2000, v3\nv_min_u32 v3, L_abort-L_first, v3\ns_mov_b32 exec_hi, 0\nglobal_load_dword v123, v3, s[60:61]\ns_mov_b64 exec, -1')
        a('L_rest1:')
        a('s_waitcnt lgkmcnt(0)')
        a('s_mov_b64 s[44:45], s[32:33]')
        a('s_cmp_gt_u32 s3, 2\ns_cbranch_scc0 L_ab')
        a('s_barrier')
        a('s_cmp_lt_u32 s3, 11\ns_cbranch_scc1 L_att')
        a('s_branch L_c_main')
        a('L_exit:')
        a('s_endpgm')
        a('L_ab:')
        a('s_load_dword s52, s[32:33], 0')
        a('s_setprio 3')
        a('s_mov_b64 s[64:65], s[8:9]\ns_mov_b32 s66, 2048\ns_lshl_b32 s59, s54, 8')
        a('v_bfe_u32 v7, v2, 2, 1\nv_lshlrev_b32 v7, 10, v7\nv_lshl_add_u32 v7, v1, 4, v7\nv_lshlrev_b32 v13, 4, v0')
        for ks in range(4):
            a(f'buffer_load_dwordx4 v[{16+4*ks}:{19+4*ks}], v7, s[64:67], s59 offen offset:{ks*64}')
        a('s_cmp_eq_u32 s3, 1\ns_cbranch_scc1 L_ab1')
        a('s_mov_b64 s[40:41], s[26:27]\ns_mov_b32 s42, 1024')
        a('buffer_load_dwordx4 v[116:119], v13, s[64:67], 0 offen\nbuffer_load_dwordx4 v[120:123], v13, s[64:67], 0 offen offset:1024\nbuffer_load_dwordx4 v[124:127], v13, s[40:43], 0 offen')
        a('L_ab1:')
        a('s_barrier')
        a('s_branch L_ab2')

    def sec_loader(lab='L_loader'):
        nonlocal Ws, We
        a(lab + ':')
        a('s_setprio 2')
        a('v_mov_b32 v8, 0xff800000\nv_cmp_gt_u32 vcc, 4, v0\nv_lshl_add_u32 v3, v0, 2, v14\nv_cndmask_b32 v4, 0, v8, vcc\nds_write_b32 v3, v4')
        a('v_lshrrev_b32 v10, 3, v0\nv_and_b32 v11, 1, v1\nv_lshlrev_b32 v11, 1, v11\nv_and_b32 v12, 7, v0\nv_xor_b32 v11, v11, v12\nv_lshlrev_b32 v11, 4, v11')
        def tile_voff(stride):
            d = 8 * stride - 1024
            a(f'v_mul_u32_u24 v3, {stride}, v10\nv_add_u32 v3, v3, v11\nv_xor_b32 v4, 64, v3\nv_add_u32 v4, {d}, v4\nv_add_u32 v5, {2*d}, v3\nv_add_u32 v6, {2*d}, v4')
        def setup(ph):
            a(f'; ---- {ph}')
            if ph == 'wq':
                tile_voff(8192)
                a('s_lshl_b32 s56, s4, 3\ns_add_u32 s56, s56, s53\ns_lshl_b32 s57, s54, 13\ns_add_u32 s56, s56, s57\ns_lshl_b32 s56, s56, 7')
                return 's[14:15]', 0x400000, L_WQ, 32 * 8192
            if ph == 'gu':
                tile_voff(3584)
                a('s_mul_i32 s56, s54, 3584\ns_add_u32 s56, s56, s7\ns_lshl_b32 s56, s56, 7')
                return None, 1835008, L_GU, 32 * 3584
            if ph == 'k':
                a('s_lshr_b32 s60, s5, 4\ns_lshl_b32 s61, s60, 3\ns_add_u32 s61, s61, s4\ns_lshl_b32 s61, s61, 22')
                a('s_and_b32 s57, s5, 15\ns_lshl_b32 s62, s57, 16\ns_add_u32 s61, s61, s62\ns_add_u32 s61, s61, 0x300000')
                a(f's_mul_i32 s55, s57, {rot*4096}')
                a('v_xor_b32 v3, v1, v2\nv_lshlrev_b32 v3, 4, v3\nv_lshl_add_u32 v3, v1, 8, v3')
                a('v_xor_b32 v4, 64, v3\nv_xor_b32 v5, 0x80, v3\nv_xor_b32 v6, 0xc0, v3')
                return 's[10:11]', 0x4000000, 0, None
            if ph == 'v':
                a('v_lshlrev_b32 v3, 1, v1\nv_xor_b32 v3, v3, v2\nv_lshlrev_b32 v3, 4, v3\nv_lshl_add_u32 v3, v1, 8, v3')
                a('v_mov_b32 v4, v3\nv_xor_b32 v5, 0x80, v3\nv_xor_b32 v6, 0x80, v3')
                return 's[12:13]', 0x4000000, L_V, None
            if ph == 'wd':
                a('v_lshlrev_b32 v3, 10, v1\nv_lshl_add_u32 v3, v2, 4, v3\nv_add_u32 v4, 15360, v3\nv_add_u32 v5, 30720, v3\nv_add_u32 v6, 46080, v3')
                a('s_lshl_b32 s56, s7, 6\ns_and_b32 s57, s53, 1\ns_lshl_b32 s57, s57, 3\ns_add_u32 s56, s56, s57\ns_lshl_b32 s56, s56, 10\ns_lshl_b32 s57, s54, 8\ns_add_u32 s56, s56, s57')
                return 's[24:25]', 1835008, L_WD, 4096
            if ph == 'wo':
                a('v_lshlrev_b32 v3, 12, v1\nv_lshl_add_u32 v3, v2, 4, v3\nv_add_u32 v4, 15360, v3\nv_add_u32 v5, 30720, v3\nv_add_u32 v6, 46080, v3')
                a('s_lshl_b32 s56, s4, 3\ns_add_u32 s56, s56, s53\ns_lshl_b32 s56, s56, 16\ns_lshl_b32 s57, s54, 8\ns_add_u32 s56, s56, s57')
                return 's[16:17]', 0x400000, L_WO, 1024
        Ws = W if Ws is None else Ws
        We = W if We is None else We
        nb = Ws // 4
        known = [0]
        def signal(issued, upto):
            while known[0] < upto:
                known[0] += 1
                a(f'v_mov_b32 v9, {known[0]}\ns_waitcnt vmcnt({4*(issued-known[0])})\nds_write_b32 v14, v9 offset:{O_PROG}')
                if known[0] == G0['v'] + 16: stamp(3)
        first = True; kd_checked = False
        for ph in order:
            ptr, size, lds, gstep = setup(ph)
            a(f's_mov_b32 s38, {size}\ns_mov_b32 m0, {lds}')
            if first: a('s_waitcnt lgkmcnt(0)'); first = False
            if ph == 'gu': a('s_bitcmp0_b32 s5, 2\ns_cselect_b64 s[36:37], s[20:21], s[22:23]')
            else: a(f's_mov_b64 s[36:37], {ptr}')
            if ph in ('gu', 'wd'): a('s_cmp_lt_u32 s5, s34\ns_cselect_b32 s38, s38, 0')
            if lds < L_V and ph != 'k' and not kd_checked:
                spin_lds(O_KD, 8, 12, sleep=0); kd_checked = True
            p = pol if ph in ('k', 'v') else wpol
            win = (We if G0[ph] > G0['v'] else (Wv or W) if ph == 'v' else W) // 4
            g = G0[ph]; gend = g + NG[ph]
            while g < gend:
                free = nb if g < nb else known[0] + win
                waits = g >= free
                e = gend if waits else min(gend, free)
                if ph == 'v' and g < G0['v'] + 12: e = min(e, G0['v'] + 12)
                if waits:
                    signal(g, g - win)
                    a(f'v_mov_b32 v9, {known[0]}')
                uid[0] += 1; lid = uid[0]
                if e - g > 1: a(f'L_ld{lid}:')
                if gstep is None: a('s_and_b32 s55, s55, 0xffff\ns_add_u32 s56, s61, s55')
                if waits: a(f'v_add_u32 v9, 1, v9\ns_waitcnt vmcnt({4*win-4})\nds_write_b32 v14, v9 offset:{O_PROG}')
                for j in range(4):
                    a(f'buffer_load_dwordx4 v{3+j}, s[36:39], s56 offen offset:{j*1024} {p} lds')
                a('s_add_u32 s55, s55, 4096' if gstep is None else f's_add_u32 s56, s56, {gstep}')
                a('s_add_u32 m0, m0, 4096')
                if e - g > 1: a(f's_cmp_lt_u32 m0, {lds + (e-G0[ph])*4096}\ns_cbranch_scc1 L_ld{lid}')
                if waits: known[0] += e - g
                g = e
                if g == nb: a('s_waitcnt lgkmcnt(0)\ns_barrier')
                if ph == 'v' and g == G0['v'] + 12: spin_lds(O_GD, 2, 12, sleep=0)
            if ph == 'k': stamp(1)
            if ph == 'v': stamp(2)
        stamp(4)
        signal(END, END)
        stamp(5)
        a('s_waitcnt lgkmcnt(0)')
        finish()

    def sec_ab():
        a('L_ab2:')
        a('s_cmp_eq_u32 s3, 1')
        a(f's_mov_b32 s55, {L_GU}\ns_cselect_b32 s55, {L_WQ}, s55\ns_cselect_b32 s61, {G0["wq"]+1}, {G0["gu"]+1}')
        a('v_lshrrev_b32 v8, 2, v2\nv_lshl_add_u32 v8, v1, 3, v8\nv_lshlrev_b32 v8, 7, v8')
        a('v_and_b32 v9, 3, v2\nv_lshl_add_u32 v8, v9, 3, v8\nv_add_u32 v8, s55, v8')
        a('v_lshrrev_b32 v9, 3, v2\nv_and_b32 v10, 1, v1\nv_lshl_add_u32 v9, v10, 1, v9')
        a('v_lshl_add_u32 v8, v9, 5, v8')
        a('v_xor_b32 v9, 32, v8\nv_xor_b32 v10, 64, v8\nv_xor_b32 v11, 0x60, v8')
        a('v_mov_b32 v12, 0xffffff00')
        a(f's_lshl_b32 s56, s4, 14\ns_lshl_b32 s57, s54, 11\ns_add_u32 s56, s56, s57\ns_lshl_b32 s57, s53, 8\ns_add_u32 s56, s56, s57\ns_add_u32 s56, s56, {QB}')
        a(f's_lshl_b32 s57, s7, 12\ns_and_b32 s58, s5, 7\ns_lshl_b32 s58, s58, 9\ns_add_u32 s57, s57, s58\ns_add_u32 s57, s57, {HB}')
        a('s_cmp_eq_u32 s3, 1\ns_cselect_b32 s71, s56, s57\ns_cselect_b32 s57, 13, 8')
        a('v_lshlrev_b32 v111, s57, v1\nv_lshl_add_u32 v111, v2, 4, v111')
        a('s_getreg_b32 s60, hwreg(HW_REG_XCC_ID, 0, 3)\ns_mov_b32 s70, 0')
        if force_global: a('s_add_u32 s60, s60, s5\ns_and_b32 s60, s60, 7')
        a('s_waitcnt lgkmcnt(0)')
        a('s_add_u32 s52, s52, 0x01010108')
        tagbytes()
        a('s_or_b32 s48, s48, s60')
        a('s_cmp_eq_u32 s3, 1\ns_cbranch_scc0 L_b_gate')
        a('L_ab_gemv:')
        stamp(1)
        a('v_mov_b32 v5, -1\ns_waitcnt vmcnt(0)')
        for ks in range(4):
            spin_lds(O_PROG, 's61', 5, sleep=0 if ks else 1, cached=True)
            for t in range(4):
                for h in range(2):
                    r = 32 + t * 4 + 2 * h + (ks & 1) * 16
                    a(f'ds_read_b64_tr_b16 v[{r}:{r+1}], v{8+t} offset:{ks*4096+h*512}')
            a('s_add_u32 s61, s61, 1')
            for t in range(4):
                a(f's_waitcnt lgkmcnt({6-2*t})')
                r = 32 + t * 4 + (ks & 1) * 16
                cacc = '0' if ks == 0 else f'v[{92+4*t}:{95+4*t}]'
                a(f'v_mfma_f32_16x16x32_bf16 v[{92+4*t}:{95+4*t}], v[{16+4*ks}:{19+4*ks}], v[{r}:{r+3}], {cacc}')
        stamp(2)
        count(O_GD)
        for t in range(4):
            a(f'v_add_u32 v{112+t}, 0x80, v{92+4*t}')
        for t in range(4):
            a(f'v_and_or_b32 v{112+t}, v{112+t}, v12, s{48+t}')
        a('s_mov_b32 exec_hi, 0\nbuffer_store_dwordx4 v[112:115], v111, s[44:47], s71 offen\ns_mov_b64 exec, -1')
        stamp(3)
        a('s_cmp_eq_u32 s3, 1\ns_cbranch_scc0 L_b_h')
        a('; ---- A: gather q')
        a(f's_lshl_b32 s56, s4, 14\ns_lshr_b32 s57, s5, 4\ns_lshl_b32 s57, s57, 13\ns_add_u32 s56, s56, s57\ns_add_u32 s56, s56, {QB}\ns_add_u32 s57, s56, 4096')
        a(f'v_lshrrev_b32 v3, 1, v1\nv_mul_u32_u24 v3, {QS}, v3\nv_and_b32 v4, 1, v1\nv_lshl_add_u32 v3, v4, 7, v3\nv_lshl_add_u32 v3, v2, 1, v3\nv_add_u32 v3, {L_Q}, v3')
        def qloads(b):
            for u in range(8):
                a(f'buffer_load_dwordx4 v[{b+4*u}:{b+3+4*u}], v13, s[44:47], s{56+u//4} offen offset:{(u%4)*1024} sc1')
        def qsum(b):
            for k in range(0, 8, 2):
                a(f'v_pk_add_f32 v[{b+k}:{b+k+1}], v[{b+k}:{b+k+1}], v[{b+k+8}:{b+k+9}]\nv_pk_add_f32 v[{b+k+16}:{b+k+17}], v[{b+k+16}:{b+k+17}], v[{b+k+24}:{b+k+25}]')
            for k in range(0, 8, 2):
                a(f'v_pk_add_f32 v[{16+k}:{17+k}], v[{b+k}:{b+k+1}], v[{b+k+16}:{b+k+17}]')
        a('v_mov_b32 v6, 2')
        if adel: spin_lds(O_PROG, G0['wq'] + 4 + adel, 5, sleep=1, cached=True)
        if agap:
            qloads(64)
            spin_lds(O_PROG, G0['wq'] + 4 + agap, 5, sleep=1)
            qloads(32)
            a('s_waitcnt vmcnt(8)')
            clean_check(64, 8, 4)
            branch_if_bad(4, 'L_a_chk')
            qsum(64)
            a('s_branch L_a_got')
        a('L_a_poll:')
        guard()
        qloads(32)
        a('L_a_chk:')
        a('s_waitcnt vmcnt(0)')
        clean_check(32, 8, 4)
        branch_if_bad(4, 'L_a_slow')
        a('L_a_ok:')
        qsum(32)
        a('L_a_got:')
        stamp(4)
        for hf in range(2):
            for e in (0, 2):
                r = 16 + 4 * hf + e
                a(f'v_cvt_pk_bf16_f32 v{r}, v{r}, v{r+1}')
                a(f'ds_write_b16 v3, v{r} offset:{hf*2*QS+e*32}\nds_write_b16_d16_hi v3, v{r} offset:{hf*2*QS+e*32+32}')
        a(f'v_mov_b32 v7, s52\nds_write_b64 v14, v[6:7] offset:{O_FT}')
        a('s_waitcnt lgkmcnt(0)')
        stamp(5)
        if numa: a('s_branch L_a_cal')
        else: finish()

    def sec_a_extra():
        a('L_a_slow:')
        slow_path(32, 8, 'L_a_poll')
        a('v_mov_b32 v6, 1\ns_branch L_a_ok')
        if numa:
            a('; ---- A: which of the two result copies is homed next to this XCD (speed only)')
            a('L_a_cal:')
            a(f's_lshr_b32 s56, s2, 6\ns_lshl_b32 s56, s56, 14\ns_and_b32 s57, s2, 63\ns_lshl_b32 s57, s57, 7\ns_add_u32 s56, s56, s57\ns_add_u32 s56, s56, {CAL}\ns_add_u32 s57, s56, 8192')
            a('v_mov_b32 v3, 0\ns_mov_b64 exec, 1\ns_setprio 0')
            spin_lds(O_PROG, END - 4, 5, sleep=8)
            spin_lds(O_R0, 4, 5, sleep=0)
            a('buffer_store_dword v3, v3, s[44:47], s56 offen sc1\nbuffer_store_dword v3, v3, s[44:47], s57 offen sc1')
            a('s_waitcnt vmcnt(1)\ns_memtime s[94:95]\ns_waitcnt vmcnt(0)\ns_memtime s[96:97]\ns_waitcnt lgkmcnt(0)')
            a(f's_sub_u32 s96, s96, s94\ns_cmp_gt_u32 s96, {thr}\ns_cselect_b32 s60, 1, 2\nv_mov_b32 v3, s60\nds_write_b32 v14, v3 offset:{O_R1}\ns_waitcnt lgkmcnt(0)')
            finish()

    def sec_b():
        a('L_b_gate:')
        a(f's_lshl_b32 s56, s7, 12\ns_and_b32 s57, s53, 1\ns_lshl_b32 s57, s57, 7\ns_add_u32 s56, s56, s57\ns_add_u32 s56, s56, {HB}')
        a('v_lshrrev_b32 v13, 3, v0\nv_lshlrev_b32 v13, 8, v13\nv_and_b32 v7, 7, v0\nv_lshl_add_u32 v13, v7, 4, v13')
        a('v_bfe_u32 v108, v0, 3, 1')
        a('v_and_b32 v110, 1, v1\nv_lshlrev_b32 v110, 7, v110\nv_lshl_add_u32 v110, v108, 5, v110\nv_and_b32 v109, 3, v0\nv_lshl_add_u32 v110, v109, 3, v110')
        a(f'v_lshrrev_b32 v109, 1, v1\nv_lshl_add_u32 v110, v109, 6, v110\nv_bfe_u32 v109, v0, 2, 1\nv_lshl_add_u32 v110, v109, 2, v110\nv_add_u32 v110, {L_HA}, v110')
        a('v_mov_b32 v4, 0\nv_mov_b32 v5, 0')
        a('s_waitcnt vmcnt(0)')
        for k in range(4): a(f'v_dot2c_f32_bf16 v4, v{116+k}, v{124+k}')
        for k in range(4): a(f'v_dot2c_f32_bf16 v5, v{120+k}, v{124+k}')
        a('v_permlane32_swap_b32 v4, v5\nv_add_f32 v4, v4, v5')
        a('v_mov_b32 v5, v4\nv_permlane16_swap_b32 v4, v5\nv_add_f32 v4, v4, v5')
        for s in (8, 4, 2, 1): a(f'v_add_f32_dpp v4, v4, v4 row_ror:{s} row_mask:0xf bank_mask:0xf')
        a('v_cvt_pk_bf16_f32 v4, v4, v4\nv_and_b32 v4, 0xffff0000, v4')
        a('v_mul_f32 v4, 0xbfb8aa3b, v4\nv_exp_f32 v4, v4\nv_add_f32 v4, 1.0, v4\nv_rcp_f32 v4, v4')
        a('v_cvt_pk_bf16_f32 v4, v4, v4\nv_and_b32 v4, 0xffff0000, v4')
        a('v_sub_f32 v5, 1.0, v4\nv_cvt_pk_bf16_f32 v5, v5, v5\nv_and_b32 v5, 0xffff0000, v5')
        a('v_lshrrev_b32 v6, 5, v0\nv_lshl_add_u32 v6, v6, 2, v14')
        a(f'ds_write2_b32 v6, v4, v5 offset0:{O_G//4} offset1:{O_G//4+2}')
        a(f'ds_write_b32 v14, v15 offset:{O_FG}')
        a(f'v_lshl_add_u32 v6, v108, 2, v14\nds_read_b32 v109, v6 offset:{O_G+8}')
        a('s_waitcnt lgkmcnt(0)')
        a('s_cmp_lt_u32 s5, s34\ns_cbranch_scc1 L_ab_gemv')
        count(O_GD)
        finish()
        a('L_b_slow:')
        slow_path(32, 2, 'L_b_poll')
        a('s_branch L_b_ok')
        a('L_b_h:')
        if bdel: spin_lds(O_PROG, G0['gu'] + 4 + bdel, 5, sleep=1, cached=True)
        a('L_b_poll:')
        guard()
        a('buffer_load_dwordx4 v[32:35], v13, s[44:47], s56 offen sc1\nbuffer_load_dwordx4 v[36:39], v13, s[44:47], s56 offen offset:2048 sc1')
        a('s_waitcnt vmcnt(0)')
        clean_check(32, 2, 4)
        branch_if_bad(4, 'L_b_slow')
        a('L_b_ok:')
        stamp(4)
        for r in (32, 36): a(f'v_permlane32_swap_b32 v{r}, v{r+1}\nv_permlane32_swap_b32 v{r+2}, v{r+3}')
        for r in (32, 36): a(f'v_add_f32 v{r}, v{r}, v{r+1}\nv_add_f32 v{r+2}, v{r+2}, v{r+3}')
        a('v_permlane16_swap_b32 v32, v34\nv_permlane16_swap_b32 v36, v38')
        a('v_add_f32 v32, v32, v34\nv_add_f32 v36, v36, v38')
        a('v_cvt_pk_bf16_f32 v32, v32, v36\nv_and_b32 v36, 0xffff0000, v32\nv_lshlrev_b32 v32, 16, v32')
        a('v_mul_f32 v33, 0xbfb8aa3b, v32\nv_exp_f32 v33, v33\nv_mul_f32 v36, v36, v109\nv_add_f32 v33, 1.0, v33\nv_rcp_f32 v33, v33\nv_mul_f32 v32, v32, v33')
        a('v_cvt_pk_bf16_f32 v32, v32, v32\nv_and_b32 v32, 0xffff0000, v32\nv_mul_f32 v32, v32, v36')
        a('v_cvt_pk_bf16_f32 v32, v32, v32\nds_write_b32 v110, v32')
        a(f'ds_write_b32 v14, v15 offset:{O_FB}')
        a('s_waitcnt lgkmcnt(0)')
        stamp(5)
        finish()

    def sec_att():
        a('L_att:')
        a('s_sub_u32 s3, s3, 3\ns_setprio 1\ns_lshl_b32 s55, s3, 13')
        a('v_xor_b32 v4, v1, v2\nv_lshlrev_b32 v3, 8, v2\nv_lshl_add_u32 v3, v4, 4, v3\nv_add_u32 v3, s55, v3')
        a('v_xor_b32 v4, 64, v3\nv_xor_b32 v5, 0x80, v3\nv_xor_b32 v6, 0xc0, v3')
        a(f'v_and_b32 v12, 3, v2\nv_mul_u32_u24 v13, {QS}, v12\nv_lshl_add_u32 v13, v1, 4, v13\nv_add_u32 v13, {L_Q}, v13')
        a(f's_lshl_b32 s56, s3, 6\ns_add_u32 s56, s56, {L_P}\nv_mul_u32_u24 v7, {PS}, v12\nv_lshl_add_u32 v7, v1, 3, v7\nv_add_u32 v7, s56, v7')
        a('v_lshl_add_u32 v12, v12, 2, v14')
        a(f'v_lshrrev_b32 v9, 2, v2\nv_mul_u32_u24 v8, {PS}, v9\nv_lshl_add_u32 v8, v1, 4, v8\nv_add_u32 v8, {L_P}, v8')
        a('v_lshl_add_u32 v10, v1, 3, v9\nv_lshlrev_b32 v10, 8, v10\nv_and_b32 v11, 1, v1\nv_lshl_add_u32 v9, v11, 2, v9\nv_xor_b32 v9, s3, v9\nv_lshl_add_u32 v10, v9, 5, v10')
        a(f'v_and_b32 v9, 3, v2\nv_lshl_add_u32 v10, v9, 3, v10\nv_add_u32 v10, {L_V}, v10')
        a('v_lshlrev_b32 v11, 14, v1\nv_lshl_add_u32 v11, v9, 2, v11\nv_lshrrev_b32 v72, 2, v2\nv_lshl_add_u32 v11, v72, 8, v11')
        a('s_and_b32 s57, s5, 7\ns_lshl_b32 s57, s57, 4\ns_bfe_u32 s60, s5, 0x10003\ns_lshl_b32 s60, s60, 10\ns_add_u32 s57, s57, s60\ns_lshr_b32 s60, s5, 4\ns_lshl_b32 s60, s60, 7\ns_add_u32 s57, s57, s60')
        a(f's_lshl_b32 s60, s4, 16\ns_add_u32 s57, s57, s60\ns_lshl_b32 s60, s3, 11\ns_add_u32 s57, s57, s60\ns_add_u32 s57, s57, {OB}')
        a(f's_lshl_b32 s56, s4, 5\ns_add_u32 s56, s56, s5\ns_lshl_b32 s56, s56, 6\ns_add_u32 s56, s56, {ST}')
        a('s_mov_b32 s58, 0x3db504f3\ns_mov_b32 s59, 0x3fb8aa3b')
        a('v_lshlrev_b32 v9, 3, v9\nv_mov_b32 v80, 0xfffff000\nv_lshlrev_b32 v81, 4, v1\nv_lshl_add_u32 v82, v1, 2, v14')
        a('v_mov_b32 v84, 0x3f803f80\nv_mov_b32 v85, v84\nv_mov_b32 v86, v84\nv_mov_b32 v87, v84')
        a(f's_lshl_b32 s61, s3, 1\ns_add_u32 s61, s61, {G0["k"]+2}')
        stamp(1)
        spin_lds(O_PROG, 's61', 72, sleep=2)
        stamp(2)
        for t in range(2):
            for ks in range(4):
                r = 16 + (t * 4 + ks) * 4
                a(f'ds_read_b128 v[{r}:{r+3}], v{3+ks} offset:{t*4096}')
        count(O_KD)
        spin_lds(O_FT, 1, 75, sleep=1, extra=f'ds_read_b32 v73, v14 offset:{O_TAG}')
        stamp(3)
        for ks in range(4): a(f'ds_read_b128 v[{48+4*ks}:{51+4*ks}], v13 offset:{ks*64}')
        a('v_readfirstlane_b32 s6, v75\nv_readfirstlane_b32 s52, v73\nv_alignbit_b32 v9, v73, v73, v9\nv_and_b32 v9, 0xfff, v9')
        tagwords()
        if stamps: a('s_waitcnt lgkmcnt(0)')
        for ks in range(4):
            if not stamps: a(f's_waitcnt lgkmcnt({3-ks})')
            for t in range(2):
                d = 64 + t * 4; kf = 16 + (t * 4 + ks) * 4
                cacc = '0' if ks == 0 else f'v[{d}:{d+3}]'
                a(f'v_mfma_f32_16x16x32_bf16 v[{d}:{d+3}], v[{kf}:{kf+3}], v[{48+4*ks}:{51+4*ks}], {cacc}')
        for t in range(2):
            d = 64 + t * 4
            a(f'v_cvt_pk_bf16_f32 v72, v{d}, v{d+1}\nv_cvt_pk_bf16_f32 v73, v{d+2}, v{d+3}')
            a(f'v_lshlrev_b32 v{d}, 16, v72\nv_and_b32 v{d+1}, 0xffff0000, v72\nv_lshlrev_b32 v{d+2}, 16, v73\nv_and_b32 v{d+3}, 0xffff0000, v73')
            for r in range(4): a(f'v_mul_f32 v{d+r}, s58, v{d+r}')
            a(f'v_cvt_pk_bf16_f32 v72, v{d}, v{d+1}\nv_cvt_pk_bf16_f32 v73, v{d+2}, v{d+3}')
            a(f'v_lshlrev_b32 v{d}, 16, v72\nv_and_b32 v{d+1}, 0xffff0000, v72\nv_lshlrev_b32 v{d+2}, 16, v73\nv_and_b32 v{d+3}, 0xffff0000, v73')
        a('v_max3_f32 v74, v64, v65, v66\nv_max3_f32 v74, v74, v67, v68\nv_max3_f32 v74, v74, v69, v70\nv_max_f32 v74, v74, v71')
        a('s_mov_b32 exec_lo, 0x000f000f\ns_mov_b32 exec_hi, 0x000f000f')
        a(f'ds_max_f32 v12, v74 offset:{O_MX}')
        count(O_CMAX)
        spin_lds(O_CMAX, 8, 72, sleep=0, extra=f'ds_read_b32 v74, v12 offset:{O_MX}')
        a('v_mul_f32 v74, 0xbfb8aa3b, v74')
        for r in range(8): a(f'v_fma_f32 v{64+r}, v{64+r}, s59, v74')
        for r in range(8): a(f'v_exp_f32 v{64+r}, v{64+r}')
        a('v_cvt_pk_bf16_f32 v76, v64, v65\nv_cvt_pk_bf16_f32 v77, v66, v67\nv_cvt_pk_bf16_f32 v78, v68, v69\nv_cvt_pk_bf16_f32 v79, v70, v71')
        a('s_mov_b32 exec_lo, 0x000f000f\ns_mov_b32 exec_hi, 0x000f000f')
        a('ds_write2_b64 v7, v[76:77], v[78:79] offset0:0 offset1:4')
        count(O_CL)
        spin_lds(O_CL, 8, 72, sleep=0)
        stamp(4)
        for ks in range(8): a(f'ds_read_b128 v[{16+4*ks}:{19+4*ks}], v8 offset:{ks*64}')
        a(f'ds_read_b32 v72, v14 offset:{O_PROG}\nds_read_b32 v73, v82 offset:{O_MX}')
        a('s_waitcnt lgkmcnt(0)')
        a('s_cmp_eq_u32 s3, 0\ns_cbranch_scc0 L_att_pv')
        for ks in range(8):
            cacc = '0' if ks == 0 else 'v[68:71]'
            a(f'v_mfma_f32_16x16x32_bf16 v[68:71], v[{16+4*ks}:{19+4*ks}], v[84:87], {cacc}')
        a('v_and_or_b32 v76, v73, v80, s48\nv_mov_b32 v78, s50\nv_mov_b32 v79, s51\nv_and_or_b32 v77, v68, v80, s49')
        a('s_mov_b32 exec_lo, 0x00010001\ns_mov_b32 exec_hi, 0x00010001')
        a('s_cmp_eq_u32 s6, 2\ns_cbranch_scc1 L_att_sl')
        a('buffer_store_dwordx4 v[76:79], v81, s[44:47], s56 offen sc1\ns_branch L_att_sd')
        a('L_att_sl:')
        a('buffer_store_dwordx4 v[76:79], v81, s[44:47], s56 offen')
        a('L_att_sd:')
        a('s_mov_b64 exec, -1')
        a('L_att_pv:')
        def pvmm(ks):
            r = 88 + 4 * ks
            cacc = '0' if ks == 0 else 'v[64:67]'
            a(f'v_mfma_f32_16x16x32_bf16 v[64:67], v[{16+4*ks}:{19+4*ks}], v[{r}:{r+3}], {cacc}')
        ks0 = 0; pend = []
        for ks1 in vph:
            spin_lds(O_PROG, G0['v'] + 2 * ks1, 72, sleep=0, cached=True)
            for ks in range(ks0, ks1):
                r = 88 + 4 * ks
                a(f'ds_read_b64_tr_b16 v[{r}:{r+1}], v10 offset:{ks*8192}\nds_read_b64_tr_b16 v[{r+2}:{r+3}], v10 offset:{ks*8192+1024}')
            new = list(range(ks0, ks1))
            todo = pend if pvpipe else new
            for ks in todo:
                a(f's_waitcnt lgkmcnt({2*(ks1-1-ks)})')
                pvmm(ks)
            pend = new if pvpipe else []
            ks0 = ks1
        for ks in pend:
            a(f's_waitcnt lgkmcnt({2*(7-ks)})')
            pvmm(ks)
        count(O_CO)
        a('s_cmp_eq_u32 s6, 2')
        a('v_and_or_b32 v64, v64, v80, v9')
        a('s_cbranch_scc0 L_att_g')
        a('buffer_store_dword v64, v11, s[44:47], s57 offen')
        stamp(5)
        finish()
        a('L_att_g:')
        a('buffer_store_dword v64, v11, s[44:47], s57 offen sc1')
        stamp(5)
        finish()

    def sec_c():
        sh = 14 if numa else 13
        def woread(n):
            a(f'ds_read_b128 v[{16+4*n}:{19+4*n}], v98 offset:{L_WO+n*4096}')
        def oloads():
            for u in range(2):
                a(f'buffer_load_dwordx4 v[{64+4*u}:{67+4*u}], v4, s[44:47], s62 offen offset:{u*1024} sc1')
        def sload():
            a('buffer_load_dwordx4 v[72:75], v6, s[44:47], s61 offen sc1')
        a('L_c_main:')
        a('s_sub_u32 s3, s3, 11')
        a('s_mov_b64 s[64:65], s[28:29]\ns_mov_b32 s66, 2048')
        a('s_lshl_b32 s55, s53, 2\ns_add_u32 s55, s55, s3')
        a(f's_lshl_b32 s61, s4, 11\ns_add_u32 s61, s61, {ST}')
        a(f's_lshl_b32 s62, s4, 16\ns_lshl_b32 s60, s55, 11\ns_add_u32 s62, s62, s60\ns_add_u32 s62, s62, {OB}')
        if warm:
            a('; bring the mailbox lines into L2 early')
            a('v_lshlrev_b32 v3, 7, v0\ns_sub_u32 s60, s61, 2048\nv_mov_b32 v4, s62\nv_mov_b32 v5, s60\nv_cmp_gt_u32 vcc, 16, v0\nv_cndmask_b32 v4, v5, v4, vcc\nv_add_u32 v3, v3, v4')
            a('s_mov_b32 exec_hi, 0\nbuffer_load_dword v122, v3, s[44:47], 0 offen sc1\ns_mov_b64 exec, -1')
        a('s_lshr_b32 s60, s53, 1\ns_lshl_b32 s60, s60, 4\ns_add_u32 s61, s61, s60')
        a('v_and_b32 v12, 1, v0\nv_lshlrev_b32 v12, 4, v12\nv_mov_b32 v13, 0xffff\nv_lshlrev_b32 v12, v12, v13\nv_bfe_u32 v13, v0, 1, 2')
        for k in range(4): a(f'v_cmp_eq_u32 vcc, {k}, v13\nv_cndmask_b32 v{8+k}, 0, v12, vcc')
        a('v_lshrrev_b32 v4, 3, v0\nv_and_b32 v5, 7, v0\nv_bfe_u32 v12, v0, 3, 1\nv_and_b32 v13, 1, v1\nv_lshlrev_b32 v6, 6, v5\nv_lshl_add_u32 v6, v13, 9, v6\nv_lshl_add_u32 v6, v12, 10, v6')
        a(f'v_lshlrev_b32 v126, {sh}, v4\nv_lshl_add_u32 v126, v5, 4, v126')
        a(f's_lshl_b32 s60, s3, 6\ns_add_u32 s60, s60, {L_HA}\nv_lshlrev_b32 v3, 5, v12\nv_lshl_add_u32 v3, v1, 3, v3\nv_add_u32 v3, s60, v3')
        a('v_lshl_add_u32 v72, v12, 2, v14')
        a('v_mov_b32 v124, 0xfffff000\nv_lshlrev_b32 v4, 4, v0\nv_lshlrev_b32 v125, 7, v0')
        a(f's_lshl_b32 s63, s3, 10\nv_add_u32 v98, s63, v4\nv_add_u32 v13, {L_CR}, v98\nv_xor_b32 v7, 0x400, v13\nv_xor_b32 v12, 0x800, v13\nv_xor_b32 v99, 0xc00, v13')
        a('v_and_b32 v2, 1, v1\nv_lshlrev_b32 v2, 2, v2\nv_and_b32 v1, 2, v1\nv_add_u32 v2, v2, v1')
        a(f's_lshl_b32 s59, s4, 3\ns_add_u32 s59, s59, s53\ns_lshl_b32 s58, s54, {sh+3}\ns_add_u32 s58, s58, {PB}')
        a('s_lshl_b32 s57, s59, 7\ns_add_u32 s57, s57, s58')
        a(f's_lshl_b32 s60, s4, {sh}\ns_add_u32 s58, s58, s60\ns_lshl_b32 s60, s53, 4\ns_add_u32 s58, s58, s60')
        a('s_lshr_b32 s60, s59, 5\ns_lshl_b32 s60, s60, 10\ns_lshl_b32 s63, s54, 8\ns_add_u32 s60, s60, s63\ns_and_b32 s63, s59, 15\ns_lshl_b32 s63, s63, 4\ns_add_u32 s60, s60, s63\ns_bfe_u32 s63, s59, 0x10004\ns_lshl_b32 s63, s63, 3\ns_add_u32 s60, s60, s63')
        if numa: a('s_add_u32 s56, s57, 8192\ns_add_u32 s55, s58, 8192')
        spin_lds(O_FG, 1, 127, sleep=8, extra=f'ds_read_b32 v123, v72 offset:{O_G}')
        a('v_mov_b32 v112, 0\nv_mov_b32 v113, 0')
        a('s_cmp_ge_u32 s5, s34\ns_cbranch_scc1 L_c_noh')
        spin_lds(O_FB, 1, 127, sleep=4, extra='ds_read_b64 v[112:113], v3')
        a('L_c_noh:')
        for n in range(2):
            for k in range(4): a(f'v_and_b32 v{40+4*n+k}, v{112+n}, v{8+k}')
        spin_lds(O_CL, 8, 127, sleep=4, extra=f'ds_read_b32 v97, v14 offset:{O_TAG}')
        a('v_readfirstlane_b32 s52, v97')
        tagwords()
        a('s_setprio 3')
        stamp(1)
        spin_lds(O_CO, 8, 127, sleep=cosleep, extra=f'ds_read_b32 v114, v14 offset:{O_PROG}')
        spin_lds(O_PROG, END - lead, 114, sleep=0, cached=True)
        stamp(3)
        oloads(); sload()
        if stamps: a('s_waitcnt lgkmcnt(0)')
        for n in range(2): a(f'ds_read_b128 v[{32+4*n}:{35+4*n}], v98 offset:{L_WD+n*4096}')
        nearly = 4 - lead
        for n in range(nearly): woread(n)
        for n in range(2):
            a(f's_waitcnt lgkmcnt({nearly+1-n})')
            cacc = '0' if n == 0 else 'v[100:103]'
            a(f'v_mfma_f32_16x16x32_bf16 v[100:103], v[{40+4*n}:{43+4*n}], v[{32+4*n}:{35+4*n}], {cacc}')
        def xcheck(pend):
            for u in range(2):
                a(f's_waitcnt vmcnt({pend+1-u})')
                clean_check(64 + 4 * u, 1, 5, first=(u == 0))
            a('v_and_b32 v5, 0xfff, v5\nv_cmp_ne_u32 vcc, 0, v5')
        xcheck(1)
        a('s_waitcnt vmcnt(0)\ns_mov_b64 s[70:71], vcc\ns_cbranch_vccz L_c_schk')
        a('s_mov_b64 exec, vcc')
        oloads()
        a('s_mov_b64 exec, -1\ns_branch L_c_schk')
        a('L_c_late:')
        spin_lds(O_PROG, END, 127, sleep=0)
        for n in range(nearly, 4): woread(n)
        a('s_waitcnt lgkmcnt(0)\ns_branch L_c_mm')
        a('L_c_stat:')
        guard()
        a('s_sleep 2')
        sload()
        a('s_waitcnt vmcnt(0)')
        a('L_c_schk:')
        clean_check(72, 1, 76)
        a(f'v_max_f32_dpp v96, v72, v72 {DP[0]}')
        branch_if_bad(76, 'L_c_stat', '0xfff')
        a(f'v_max_f32_dpp v96, v96, v96 {DP[1]}')
        a(f'ds_read_b32 v127, v14 offset:{O_PROG}')
        late = list(range(nearly, 4))
        def fill():
            if late: woread(late.pop(0))
        fill()
        a(f'v_max_f32_dpp v96, v96, v96 {DP[2]}')
        a('v_mov_b32 v97, v96')
        fill(); fill()
        a('v_permlane16_swap_b32 v96, v97\nv_max_f32 v96, v96, v97')
        a('v_sub_f32 v96, v72, v96\nv_mul_f32 v96, 0x3fb8aa3b, v96\nv_exp_f32 v96, v96')
        fill()
        a('v_mul_f32 v112, v96, v73\nv_mul_f32 v96, v96, v123\nv_mov_b32 v97, v96')
        a(f'v_add_f32_dpp v112, v112, v112 {DP[0]}')
        a('s_cmp_eq_u64 s[70:71], 0')
        a('v_permlane16_swap_b32 v96, v97')
        a(f'v_add_f32_dpp v112, v112, v112 {DP[1]}')
        stamp(2)
        a('s_cbranch_scc1 L_c_ook')
        a('s_mov_b64 exec, s[70:71]\ns_branch L_c_oloop')
        a('L_c_oy:')
        a('s_mov_b64 exec, vcc')
        guard()
        oloads()
        a('L_c_oloop:')
        xcheck(0)
        a('s_cbranch_vccnz L_c_oy')
        a('s_mov_b64 exec, -1')
        a('L_c_ook:')
        stamp(4)
        for e in range(2): a(f'v_mul_f32 v{104+e}, v96, v{64+e}')
        a(f'v_add_f32_dpp v112, v112, v112 {DP[2]}')
        for e in range(2, 4): a(f'v_mul_f32 v{104+e}, v96, v{64+e}')
        a('v_mov_b32 v113, v112')
        for e in range(4): a(f'v_fmac_f32 v{104+e}, v97, v{68+e}')
        a('v_permlane16_swap_b32 v112, v113')
        for k, d in enumerate(DP):
            for e in range(4): a(f'v_add_f32_dpp v{104+e}, v{104+e}, v{104+e} {d}')
            if k == 0: a('v_add_f32 v112, v112, v113')
            if k == 1: a('v_rcp_f32 v112, v112')
        for e in range(4): a(f'v_mul_f32 v{104+e}, v{104+e}, v112')
        if numa: count(O_R0)
        for e in range(4): a(f'v_cvt_pk_bf16_f32 v{104+e}, v{104+e}, v{104+e}')
        def ands(n):
            d = 116 + 4 * (n & 1)
            for k in range(4): a(f'v_and_b32 v{d+k}, v{104+n}, v{8+k}')
        ands(0)
        a(f's_waitcnt lgkmcnt({1 if numa and not stamps else 0})')
        a(f'v_cmp_gt_i32 vcc, {END}, v127\ns_cbranch_vccnz L_c_late')
        a('L_c_mm:')
        for n in range(4):
            if n < 3: ands(n + 1)
            d = 116 + 4 * (n & 1)
            a(f'v_mfma_f32_16x16x32_bf16 v[100:103], v[{d}:{d+3}], v[{16+4*n}:{19+4*n}], v[100:103]')
        a('ds_write_b128 v13, v[100:103]')
        count(O_CC, rtn=127)
        a('ds_read_b128 v[104:107], v7\nds_read_b128 v[108:111], v12\nds_read_b128 v[112:115], v99')
        a('s_waitcnt lgkmcnt(2)')
        a('v_readfirstlane_b32 s63, v127')
        a('v_pk_add_f32 v[104:105], v[104:105], v[100:101]\nv_pk_add_f32 v[106:107], v[106:107], v[102:103]')
        a('s_cmp_eq_u32 s63, 3\ns_cbranch_scc0 L_c_end')
        a('s_waitcnt lgkmcnt(0)')
        a('v_pk_add_f32 v[108:109], v[108:109], v[112:113]\nv_pk_add_f32 v[110:111], v[110:111], v[114:115]')
        a('v_pk_add_f32 v[104:105], v[104:105], v[108:109]\nv_pk_add_f32 v[106:107], v[106:107], v[110:111]')
        for k in range(4): a(f'v_and_or_b32 v{104+k}, v{104+k}, v124, s{48+k}')
        a('buffer_store_dwordx4 v[104:107], v126, s[44:47], s57 offen sc1')
        if numa:
            a('buffer_store_dwordx4 v[104:107], v126, s[44:47], s56 offen sc1')
            spin_lds(O_R1, 1, 108, sleep=1)
            a('v_cmp_eq_u32 vcc, 1, v108\ns_cmp_lg_u64 vcc, 0\ns_cselect_b32 s58, s58, s55')
        stamp(5)
        a('s_waitcnt vmcnt(0)\ns_branch L_c_fp1')
        a('L_c_fpoll:')
        a('s_mov_b64 exec, vcc')
        guard()
        a('L_c_fp1:')
        a('buffer_load_dwordx4 v[64:67], v125, s[44:47], s58 offen sc1')
        a('s_waitcnt vmcnt(0)')
        clean_check(64, 1, 5)
        branch_if_bad(5, 'L_c_fpoll', '0xfff')
        a('s_mov_b64 exec, -1')
        stamp(6)
        a('v_permlane32_swap_b32 v64, v65\nv_permlane32_swap_b32 v66, v67\nv_add_f32 v64, v64, v65\nv_add_f32 v66, v66, v67')
        a('v_permlane16_swap_b32 v64, v66\nv_add_f32 v64, v64, v66')
        for s in (8, 4, 2, 1): a(f'v_add_f32_dpp v64, v64, v64 row_ror:{s} row_mask:0xf bank_mask:0xf')
        a('v_cvt_pk_bf16_f32 v64, v64, v64')
        a('s_mov_b32 exec_lo, 0x00010001\ns_mov_b32 exec_hi, 0x00010001')
        a('buffer_store_short v64, v2, s[64:67], s60 offen')
        a('s_cmp_eq_u32 s2, 0\ns_cbranch_scc0 L_c_end')
        a('; every workgroup has used the tag by now: it becomes the next launch\'s epoch')
        a('s_mov_b64 exec, 1\nv_mov_b32 v4, s52\nv_mov_b32 v5, 0\nbuffer_store_dword v4, v5, s[44:47], 0 offen')
        a('L_c_end:')
        stamp(7)

    def sec_fin():
        a('L_fin:')
        a('s_mov_b64 exec, -1\ns_waitcnt lgkmcnt(0) vmcnt(0)')
        a('s_memrealtime s[90:91]\ns_getreg_b32 s92, hwreg(HW_REG_XCC_ID)\ns_waitcnt lgkmcnt(0)')
        if not ampall:
            for k in range(11): a(f'v_writelane_b32 v4, s{72+2*k}, {k}')
            a('v_writelane_b32 v4, s68, 11\ns_getreg_b32 s93, hwreg(HW_REG_HW_ID)\nv_writelane_b32 v4, s93, 12')
            a(f's_mul_i32 s60, s2, {NW}\ns_add_u32 s60, s60, s69\ns_lshl_b32 s60, s60, 6\ns_add_u32 s60, s60, {STAMP}')
            a('v_lshlrev_b32 v3, 2, v0\nv_add_u32 v3, s60, v3\ns_mov_b64 exec, 0xffff\nglobal_store_dword v3, v4, s[32:33]')
        else:
            a(f's_cmp_eq_u32 s69, 0\ns_cbranch_scc0 L_am1\ns_lshl_b32 s60, s2, 2\ns_add_u32 s60, s60, {STAMP}\nv_mov_b32 v3, s60\nv_mov_b32 v5, s72\ns_mov_b64 exec, 1\nglobal_store_dword v3, v5, s[32:33] sc1\ns_endpgm')
            a('L_am1:')
            a('s_cmp_eq_u32 s2, 0\ns_cbranch_scc0 L_abort\ns_cmp_ge_u32 s69, 11\ns_cbranch_scc0 L_abort')
            a(f's_sleep 100\nv_lshlrev_b32 v3, 4, v0\nv_add_u32 v3, {STAMP}, v3\nglobal_load_dwordx4 v[8:11], v3, s[32:33] sc1\ns_waitcnt vmcnt(0)')
            a('v_subrev_u32 v8, s72, v8\nv_subrev_u32 v9, s72, v9\nv_subrev_u32 v10, s72, v10\nv_subrev_u32 v11, s72, v11\nv_min3_i32 v8, v8, v9, v10\nv_min_i32 v8, v8, v11\nv_max_i32 v8, 0xfffffe00, v8')
            a('s_mov_b32 s61, 0\ns_mov_b32 s62, 0\nL_am2:\ns_nop 4\nv_readlane_b32 s63, v8, s62\ns_nop 4\ns_min_i32 s61, s61, s63\ns_add_u32 s62, s62, 1\ns_cmp_lt_u32 s62, 64\ns_cbranch_scc1 L_am2')
            if ampsel == 'xcc': a('s_and_b32 s60, s92, 7\ns_mul_i32 s60, s60, 100\ns_add_u32 s90, s72, s60\ns_add_u32 s90, s90, s61')
            elif ampsel is not None:
                a(f'v_mov_b32 v3, {STAMP+4*ampsel}\nglobal_load_dword v9, v3, s[32:33] sc1\ns_waitcnt vmcnt(0)\nv_readfirstlane_b32 s60, v9\ns_nop 4\ns_sub_u32 s60, s60, s72\ns_sub_u32 s60, s60, s61\ns_mul_i32 s60, s60, 10\ns_add_u32 s90, s72, s60\ns_add_u32 s90, s90, s61')
            a('s_sub_u32 s60, s90, s72\ns_sub_u32 s60, s60, s61\ns_mul_i32 s60, s60, 10\ns_min_u32 s60, s60, 100000\ns_add_u32 s60, s60, 2000\ns_add_u32 s60, s60, s61')
            a('L_am3:\ns_memrealtime s[62:63]\ns_waitcnt lgkmcnt(0)\ns_sub_u32 s62, s62, s72\ns_cmp_lt_u32 s62, s60\ns_cbranch_scc1 L_am3')

    a.raw(HDR.rstrip('\n'))
    a.raw(f'; @launch grid=(256,1,1) block=({NW*64},1,1) lds={LDS_BYTES}')
    a.raw(DOC)
    a.raw('.amdgcn_target "amdgcn-amd-amdhsa--gfx950"')
    a.raw('.text\n.p2align 12')
    a('L_first:')
    sec_att(); sec_b(); sec_a_extra()
    a.raw('.fill (0xd00 - (. - L_first)) / 4, 4, 0xbf810000')
    a.raw(f'.globl {KN}\n.p2align 8\n.type {KN},@function\n{KN}:')
    a.flush_hist()
    if split:
        sec_entry()
        a('L_loader:')
        a(f's_getreg_b32 s60, hwreg(HW_REG_XCC_ID, 0, 3)\ns_bitcmp1_b32 {split[0]}, s60\ns_cbranch_scc1 L_loader2')
        Ws = 36
        W, Wv = split[1], split[2]
        sec_loader('L_loader1')
        sec_ab()
        a.raw('.p2align 12')
        W, Wv = split[3], split[4]
        sec_loader('L_loader2')
    else:
        sec_entry(); sec_loader(); sec_ab()
    a.raw('.p2align 12')
    sec_c()
    if fin: sec_fin()
    a('L_abort:')
    a('s_endpgm')
    a.raw('.section .rodata,"a"\n.p2align 6')
    a.raw(f'.amdhsa_kernel {KN}')
    a.raw('  .amdhsa_next_free_vgpr 128\n  .amdhsa_next_free_sgpr 102\n  .amdhsa_accum_offset 128\n  .amdhsa_group_segment_fixed_size 0\n  .amdhsa_kernarg_size 104')
    a.raw('  .amdhsa_user_sgpr_count 2\n  .amdhsa_user_sgpr_kernarg_segment_ptr 1\n  .amdhsa_system_sgpr_workgroup_id_x 1\n.end_amdhsa_kernel')
    txt = a.text()
    if fin:
        z = ''.join(f'    s_mov_b32 s{74+2*k}, 0\n' for k in range(8)) if stamps else ''
        txt = txt.replace('    v_readfirstlane_b32 s3, v1\n', '    v_readfirstlane_b32 s3, v1\n    s_nop 1\n    s_mov_b32 s69, s3\n' + z, 1)
    return txt

if __name__ == '__main__':
    kw = eval('dict(%s)' % (sys.argv[2] if len(sys.argv) > 2 else ''))
    open(sys.argv[1], 'w').write(gen(**kw))
```

```python
import sys, os
sys.path.insert(0, 'tools')
from asmlib import Asm

KN = 'gated_mix__sliding_block_cached__swiglu_ffn__decode_kernel'
REF = 'gated_mix__sliding_block_cached__swiglu_ffn__decode.s.ref'
HDR = open(REF).read().split('; Override launch')[0] if os.path.exists(REF) else ''

QB, HB, ST, OB, PB, CAL = 0x10000, 0x30000, 0x50000, 0x60000, 0x100000, 0x180000
WS_SPAN = 0x200000
STAMP = 0x8000000
L_V = 65536
L_GU = L_V + 49152
L_WD, L_WO = 16384, 24576
L_Q = 131072
QS, PS = 320, 576
L_P = L_Q + 1280
L_MISC = L_P + 2304
O_MX = 0
O_PROG, O_CMAX, O_CL, O_KD, O_CO, O_FB, O_FG, O_CC = [32 + 4 * k for k in range(8)]
O_FT, O_TAG, O_G = 64, 68, 72
O_GD, O_R0, O_R1 = 96, 104, 108
L_HA = L_MISC + 256
L_CR = L_Q + 4096
assert L_HA + 256 <= L_CR
L_WQ = L_CR + 4096
LDS_BYTES = L_WQ + 16384
NW = 15
ROLES = [('A', [1]), ('B', [2]), ('L', [0]), ('att', list(range(3, 11))), ('C', [11, 12, 13, 14])]

DOC = '''; ---------------------------------------------------------------------------------------------
; One launch, 256 workgroups (one per CU), 15 waves each.  wg = 8*i + G, G = kv head.
;   wave 0      loader : streams wq tile, gate/up tile, K chunk, V chunk, w_down tile, wo tile into LDS
;   wave 1 (A)  x@wq tile -> partial q to the group, gathers q for (batch, 4 heads)
;   waves 11-14 merge the 16 chunk partials per batch (max/sum rescale), times wo rows (+ FFN rows),
; epoch word at d_ws[0]; stores stay in the XCD L2 only when the whole group reported the same XCD.
; ---------------------------------------------------------------------------------------------'''

def gen(ampall=False, light=False, stamps=False, limit=1 << 22, pol='nt', W=36, Ws=None, Wv=None, We=28, rot=1,
        vph=(6, 8), force_global=False, ktry=6, agap=4, order=('wq', 'gu', 'k', 'v', 'wd', 'wo'), lead=3, thr=64,
        pvpipe=False, cosleep=0, numa=True, warm=True, wpol=None, adel=0, bdel=3, split=None, evenheavy=2, ampsel=None):
    a = Asm()
    fin = stamps or light
    if light: stamps = False
    wpol = pol if wpol is None else wpol
    NG = dict(wq=4, k=16, v=16, gu=4, wd=2, wo=4)
    G0 = {}; n = 0
    for ph in order: G0[ph] = n; n += NG[ph]
    END = n
    assert order.index('gu') < order.index('v') and 1 <= lead <= 4
    DP = [d + ' row_mask:0xf bank_mask:0xf' for d in ('quad_perm:[1,0,3,2]', 'quad_perm:[2,3,0,1]', 'row_half_mirror')]
    uid = [0]

    def stamp(k):
        if stamps or (fin and k == 0): a(f's_memrealtime s[{72+2*k}:{73+2*k}]')
    def guard():
        a(f's_add_u32 s68, s68, 1\ns_cmp_gt_u32 s68, {limit}\ns_cbranch_scc1 L_abort')
    def spin_lds(off, val, tmp, sleep=1, extra=None, cached=False):
        uid[0] += 1; n = uid[0]
        a(f's_branch L_sp{n}c' if cached else f's_branch L_sp{n}b')
        a(f'L_sp{n}:')
        guard()
        if sleep: a(f's_sleep {sleep}')
        a(f'L_sp{n}b:')
        a(f'ds_read_b32 v{tmp}, v14 offset:{off}')
        if extra: a(extra)
        a('s_waitcnt lgkmcnt(0)')
        if cached: a(f'L_sp{n}c:')
        a(f'v_cmp_gt_i32 vcc, {val}, v{tmp}')
        a(f's_cbranch_vccnz L_sp{n}')
    def tagbytes():
        a('s_and_b32 s48, s52, 0xf8\ns_bfe_u32 s49, s52, 0x80008\ns_bfe_u32 s50, s52, 0x80010\ns_lshr_b32 s51, s52, 24')
    def tagwords():
        a('s_and_b32 s48, s52, 0xfff\ns_bfe_u32 s49, s52, 0xc0008\ns_bfe_u32 s50, s52, 0xc0010\ns_and_b32 s51, s52, 15\ns_lshl_b32 s51, s51, 8\ns_lshr_b32 s35, s52, 24\ns_or_b32 s51, s51, s35')
    def clean_check(base, nload, vor, first=True):
        for u in range(nload):
            r = base + 4 * u
            for e in range(4):
                a(f'v_xor_b32 v{r+e}, s{48+e}, v{r+e}')
            if first and u == 0:
                a(f'v_or3_b32 v{vor}, v{r}, v{r+1}, v{r+2}\nv_or_b32 v{vor}, v{vor}, v{r+3}')
            else:
                a(f'v_or3_b32 v{vor}, v{vor}, v{r}, v{r+1}\nv_or3_b32 v{vor}, v{vor}, v{r+2}, v{r+3}')
    def branch_if_bad(vor, label, m='0xff'):
        a(f'v_and_b32 v{vor}, {m}, v{vor}\nv_cmp_ne_u32 vcc, 0, v{vor}\ns_cbranch_vccnz {label}')
    def slow_path(base, nload, retry):
        a(f's_add_u32 s70, s70, 1\ns_cmp_lt_u32 s70, {ktry}\ns_cbranch_scc1 {retry}')
        a('s_mov_b32 exec_hi, 0\nbuffer_store_dwordx4 v[112:115], v111, s[44:47], s71 offen sc1\ns_mov_b64 exec, -1')
        a('v_mov_b32 v4, 0')
        for u in range(nload):
            r = base + 4 * u
            a(f'v_and_b32 v{r}, -8, v{r}\nv_or3_b32 v4, v4, v{r}, v{r+1}\nv_or3_b32 v4, v4, v{r+2}, v{r+3}')
        branch_if_bad(4, retry)
    def finish():
        a('s_branch L_fin' if fin else 's_endpgm')
    def count(off, rtn=None):
        op = f'ds_add_rtn_u32 v{rtn}, v14, v15' if rtn else 'ds_add_u32 v14, v15'
        a(f's_mov_b64 exec, 1\n{op} offset:{off}\ns_mov_b64 exec, -1')

    def sec_entry():
        stamp(0)
        a('s_load_dwordx16 s[8:23], s[0:1], 0\ns_load_dwordx8 s[24:31], s[0:1], 64\ns_load_dwordx2 s[32:33], s[0:1], 96')
        a('s_cmp_ge_u32 s2, 256\ns_cbranch_scc1 L_exit')
        a('v_lshrrev_b32 v1, 6, v0\nv_and_b32 v0, 63, v0')
        a('s_and_b32 s4, s2, 7\ns_lshr_b32 s5, s2, 3')
        a('v_readfirstlane_b32 s3, v1')
        a('v_lshrrev_b32 v1, 4, v0\nv_and_b32 v2, 15, v0')
        a(f'v_mov_b32 v14, {L_MISC}\nv_mov_b32 v15, 1')
        a('s_mov_b32 s39, 0x20000\ns_mov_b32 s43, 0x20000\ns_mov_b32 s47, 0x20000\ns_mov_b32 s67, 0x20000')
        a(f's_mov_b32 s46, {WS_SPAN}\ns_mov_b32 s68, 0')
        a('; s7 = FFN 64-column block, s34 = workgroups of this group with FFN work, s54 = i&3, s53 = i>>2')
        if evenheavy == 2:
            a('s_max_u32 s7, s4, 1\ns_lshl_b32 s7, s7, 2\ns_sub_u32 s7, s7, 4\ns_lshr_b32 s34, s5, 3\ns_add_u32 s7, s7, s34')
            a('s_cmp_eq_u32 s4, 0\ns_cselect_b32 s34, 0, 32')
        elif evenheavy:
            a('s_mul_i32 s7, s4, 7\ns_add_u32 s7, s7, 1\ns_lshr_b32 s7, s7, 1\ns_lshr_b32 s34, s5, 3\ns_add_u32 s7, s7, s34')
            a('s_bitcmp0_b32 s4, 0\ns_cselect_b32 s34, 32, 24')
        else:
            a('s_min_u32 s7, s4, 4\ns_mul_i32 s34, s4, 3\ns_add_u32 s7, s7, s34\ns_lshr_b32 s34, s5, 3\ns_add_u32 s7, s7, s34')
            a('s_cmp_lt_u32 s4, 4\ns_cselect_b32 s34, 32, 24')
        a('s_and_b32 s54, s5, 3\ns_lshr_b32 s53, s5, 2')
        a('s_cmp_eq_u32 s3, 0\ns_cbranch_scc1 L_loader')
        a('s_cmp_eq_u32 s3, 3\ns_cbranch_scc0 L_rest1')
        a('s_getpc_b64 s[60:61]')
        a('L_pc:')
        a('s_sub_u32 s60, s60, L_pc-L_first\ns_subb_u32 s61, s61, 0')
        a('v_lshlrev_b32 v3, 7, v0\nglobal_load_dword v122, v3, s[60:61]')
        a('v_add_u32 v3, 0x2000, v3\nv_min_u32 v3, L_abort-L_first, v3\ns_mov_b32 exec_hi, 0\nglobal_load_dword v123, v3, s[60:61]\ns_mov_b64 exec, -1')
        a('L_rest1:')
        a('s_waitcnt lgkmcnt(0)')
        a('s_mov_b64 s[44:45], s[32:33]')
        a('s_cmp_gt_u32 s3, 2\ns_cbranch_scc0 L_ab')
        a('s_barrier')
        a('s_cmp_lt_u32 s3, 11\ns_cbranch_scc1 L_att')
        a('s_branch L_c_main')
        a('L_exit:')
        a('s_endpgm')
        a('L_ab:')
        a('s_load_dword s52, s[32:33], 0')
        a('s_setprio 3')
        a('s_mov_b64 s[64:65], s[8:9]\ns_mov_b32 s66, 2048\ns_lshl_b32 s59, s54, 8')
        a('v_bfe_u32 v7, v2, 2, 1\nv_lshlrev_b32 v7, 10, v7\nv_lshl_add_u32 v7, v1, 4, v7\nv_lshlrev_b32 v13, 4, v0')
        for ks in range(4):
            a(f'buffer_load_dwordx4 v[{16+4*ks}:{19+4*ks}], v7, s[64:67], s59 offen offset:{ks*64}')
        a('s_cmp_eq_u32 s3, 1\ns_cbranch_scc1 L_ab1')
        a('s_mov_b64 s[40:41], s[26:27]\ns_mov_b32 s42, 1024')
        a('buffer_load_dwordx4 v[116:119], v13, s[64:67], 0 offen\nbuffer_load_dwordx4 v[120:123], v13, s[64:67], 0 offen offset:1024\nbuffer_load_dwordx4 v[124:127], v13, s[40:43], 0 offen')
        a('L_ab1:')
        a('s_barrier')
        a('s_branch L_ab2')

    def sec_loader(lab='L_loader'):
        nonlocal Ws, We
        a(lab + ':')
        a('s_setprio 2')
        a('v_mov_b32 v8, 0xff800000\nv_cmp_gt_u32 vcc, 4, v0\nv_lshl_add_u32 v3, v0, 2, v14\nv_cndmask_b32 v4, 0, v8, vcc\nds_write_b32 v3, v4')
        a('v_lshrrev_b32 v10, 3, v0\nv_and_b32 v11, 1, v1\nv_lshlrev_b32 v11, 1, v11\nv_and_b32 v12, 7, v0\nv_xor_b32 v11, v11, v12\nv_lshlrev_b32 v11, 4, v11')
        def tile_voff(stride):
            d = 8 * stride - 1024
            a(f'v_mul_u32_u24 v3, {stride}, v10\nv_add_u32 v3, v3, v11\nv_xor_b32 v4, 64, v3\nv_add_u32 v4, {d}, v4\nv_add_u32 v5, {2*d}, v3\nv_add_u32 v6, {2*d}, v4')
        def setup(ph):
            a(f'; ---- {ph}')
            if ph == 'wq':
                tile_voff(8192)
                a('s_lshl_b32 s56, s4, 3\ns_add_u32 s56, s56, s53\ns_lshl_b32 s57, s54, 13\ns_add_u32 s56, s56, s57\ns_lshl_b32 s56, s56, 7')
                return 's[14:15]', 0x400000, L_WQ, 32 * 8192
            if ph == 'gu':
                tile_voff(3584)
                a('s_mul_i32 s56, s54, 3584\ns_add_u32 s56, s56, s7\ns_lshl_b32 s56, s56, 7')
                return None, 1835008, L_GU, 32 * 3584
            if ph == 'k':
                a('s_lshr_b32 s60, s5, 4\ns_lshl_b32 s61, s60, 3\ns_add_u32 s61, s61, s4\ns_lshl_b32 s61, s61, 22')
                a('s_and_b32 s57, s5, 15\ns_lshl_b32 s62, s57, 16\ns_add_u32 s61, s61, s62\ns_add_u32 s61, s61, 0x300000')
                a(f's_mul_i32 s55, s57, {rot*4096}')
                a('v_xor_b32 v3, v1, v2\nv_lshlrev_b32 v3, 4, v3\nv_lshl_add_u32 v3, v1, 8, v3')
                a('v_xor_b32 v4, 64, v3\nv_xor_b32 v5, 0x80, v3\nv_xor_b32 v6, 0xc0, v3')
                return 's[10:11]', 0x4000000, 0, None
            if ph == 'v':
                a('v_lshlrev_b32 v3, 1, v1\nv_xor_b32 v3, v3, v2\nv_lshlrev_b32 v3, 4, v3\nv_lshl_add_u32 v3, v1, 8, v3')
                a('v_mov_b32 v4, v3\nv_xor_b32 v5, 0x80, v3\nv_xor_b32 v6, 0x80, v3')
                return 's[12:13]', 0x4000000, L_V, None
            if ph == 'wd':
                a('v_lshlrev_b32 v3, 10, v1\nv_lshl_add_u32 v3, v2, 4, v3\nv_add_u32 v4, 15360, v3\nv_add_u32 v5, 30720, v3\nv_add_u32 v6, 46080, v3')
                a('s_lshl_b32 s56, s7, 6\ns_and_b32 s57, s53, 1\ns_lshl_b32 s57, s57, 3\ns_add_u32 s56, s56, s57\ns_lshl_b32 s56, s56, 10\ns_lshl_b32 s57, s54, 8\ns_add_u32 s56, s56, s57')
                return 's[24:25]', 1835008, L_WD, 4096
            if ph == 'wo':
                a('v_lshlrev_b32 v3, 12, v1\nv_lshl_add_u32 v3, v2, 4, v3\nv_add_u32 v4, 15360, v3\nv_add_u32 v5, 30720, v3\nv_add_u32 v6, 46080, v3')
                a('s_lshl_b32 s56, s4, 3\ns_add_u32 s56, s56, s53\ns_lshl_b32 s56, s56, 16\ns_lshl_b32 s57, s54, 8\ns_add_u32 s56, s56, s57')
                return 's[16:17]', 0x400000, L_WO, 1024
        Ws = W if Ws is None else Ws
        We = W if We is None else We
        nb = Ws // 4
        known = [0]
        def signal(issued, upto):
            while known[0] < upto:
                known[0] += 1
                a(f'v_mov_b32 v9, {known[0]}\ns_waitcnt vmcnt({4*(issued-known[0])})\nds_write_b32 v14, v9 offset:{O_PROG}')
                if known[0] == G0['v'] + 16: stamp(3)
        first = True; kd_checked = False
        for ph in order:
            ptr, size, lds, gstep = setup(ph)
            a(f's_mov_b32 s38, {size}\ns_mov_b32 m0, {lds}')
            if first: a('s_waitcnt lgkmcnt(0)'); first = False
            if ph == 'gu': a('s_bitcmp0_b32 s5, 2\ns_cselect_b64 s[36:37], s[20:21], s[22:23]')
            else: a(f's_mov_b64 s[36:37], {ptr}')
            if ph in ('gu', 'wd'): a('s_cmp_lt_u32 s5, s34\ns_cselect_b32 s38, s38, 0')
            if lds < L_V and ph != 'k' and not kd_checked:
                spin_lds(O_KD, 8, 12, sleep=0); kd_checked = True
            p = pol if ph in ('k', 'v') else wpol
            win = (We if G0[ph] > G0['v'] else (Wv or W) if ph == 'v' else W) // 4
            g = G0[ph]; gend = g + NG[ph]
            while g < gend:
                free = nb if g < nb else known[0] + win
                waits = g >= free
                e = gend if waits else min(gend, free)
                if ph == 'v' and g < G0['v'] + 12: e = min(e, G0['v'] + 12)
                if waits:
                    signal(g, g - win)
                    a(f'v_mov_b32 v9, {known[0]}')
                uid[0] += 1; lid = uid[0]
                if e - g > 1: a(f'L_ld{lid}:')
                if gstep is None: a('s_and_b32 s55, s55, 0xffff\ns_add_u32 s56, s61, s55')
                if waits: a(f'v_add_u32 v9, 1, v9\ns_waitcnt vmcnt({4*win-4})\nds_write_b32 v14, v9 offset:{O_PROG}')
                for j in range(4):
                    a(f'buffer_load_dwordx4 v{3+j}, s[36:39], s56 offen offset:{j*1024} {p} lds')
                a('s_add_u32 s55, s55, 4096' if gstep is None else f's_add_u32 s56, s56, {gstep}')
                a('s_add_u32 m0, m0, 4096')
                if e - g > 1: a(f's_cmp_lt_u32 m0, {lds + (e-G0[ph])*4096}\ns_cbranch_scc1 L_ld{lid}')
                if waits: known[0] += e - g
                g = e
                if g == nb: a('s_waitcnt lgkmcnt(0)\ns_barrier')
                if ph == 'v' and g == G0['v'] + 12: spin_lds(O_GD, 2, 12, sleep=0)
            if ph == 'k': stamp(1)
            if ph == 'v': stamp(2)
        stamp(4)
        signal(END, END)
        stamp(5)
        a('s_waitcnt lgkmcnt(0)')
        finish()

    def sec_ab():
        a('L_ab2:')
        a('s_cmp_eq_u32 s3, 1')
        a(f's_mov_b32 s55, {L_GU}\ns_cselect_b32 s55, {L_WQ}, s55\ns_cselect_b32 s61, {G0["wq"]+1}, {G0["gu"]+1}')
        a('v_lshrrev_b32 v8, 2, v2\nv_lshl_add_u32 v8, v1, 3, v8\nv_lshlrev_b32 v8, 7, v8')
        a('v_and_b32 v9, 3, v2\nv_lshl_add_u32 v8, v9, 3, v8\nv_add_u32 v8, s55, v8')
        a('v_lshrrev_b32 v9, 3, v2\nv_and_b32 v10, 1, v1\nv_lshl_add_u32 v9, v10, 1, v9')
        a('v_lshl_add_u32 v8, v9, 5, v8')
        a('v_xor_b32 v9, 32, v8\nv_xor_b32 v10, 64, v8\nv_xor_b32 v11, 0x60, v8')
        a('v_mov_b32 v12, 0xffffff00')
        a(f's_lshl_b32 s56, s4, 14\ns_lshl_b32 s57, s54, 11\ns_add_u32 s56, s56, s57\ns_lshl_b32 s57, s53, 8\ns_add_u32 s56, s56, s57\ns_add_u32 s56, s56, {QB}')
        a(f's_lshl_b32 s57, s7, 12\ns_and_b32 s58, s5, 7\ns_lshl_b32 s58, s58, 9\ns_add_u32 s57, s57, s58\ns_add_u32 s57, s57, {HB}')
        a('s_cmp_eq_u32 s3, 1\ns_cselect_b32 s71, s56, s57\ns_cselect_b32 s57, 13, 8')
        a('v_lshlrev_b32 v111, s57, v1\nv_lshl_add_u32 v111, v2, 4, v111')
        a('s_getreg_b32 s60, hwreg(HW_REG_XCC_ID, 0, 3)\ns_mov_b32 s70, 0')
        if force_global: a('s_add_u32 s60, s60, s5\ns_and_b32 s60, s60, 7')
        a('s_waitcnt lgkmcnt(0)')
        a('s_add_u32 s52, s52, 0x01010108')
        tagbytes()
        a('s_or_b32 s48, s48, s60')
        a('s_cmp_eq_u32 s3, 1\ns_cbranch_scc0 L_b_gate')
        a('L_ab_gemv:')
        stamp(1)
        a('v_mov_b32 v5, -1\ns_waitcnt vmcnt(0)')
        for ks in range(4):
            spin_lds(O_PROG, 's61', 5, sleep=0 if ks else 1, cached=True)
            for t in range(4):
                for h in range(2):
                    r = 32 + t * 4 + 2 * h + (ks & 1) * 16
                    a(f'ds_read_b64_tr_b16 v[{r}:{r+1}], v{8+t} offset:{ks*4096+h*512}')
            a('s_add_u32 s61, s61, 1')
            for t in range(4):
                a(f's_waitcnt lgkmcnt({6-2*t})')
                r = 32 + t * 4 + (ks & 1) * 16
                cacc = '0' if ks == 0 else f'v[{92+4*t}:{95+4*t}]'
                a(f'v_mfma_f32_16x16x32_bf16 v[{92+4*t}:{95+4*t}], v[{16+4*ks}:{19+4*ks}], v[{r}:{r+3}], {cacc}')
        stamp(2)
        count(O_GD)
        for t in range(4):
            a(f'v_add_u32 v{112+t}, 0x80, v{92+4*t}')
        for t in range(4):
            a(f'v_and_or_b32 v{112+t}, v{112+t}, v12, s{48+t}')
        a('s_mov_b32 exec_hi, 0\nbuffer_store_dwordx4 v[112:115], v111, s[44:47], s71 offen\ns_mov_b64 exec, -1')
        stamp(3)
        a('s_cmp_eq_u32 s3, 1\ns_cbranch_scc0 L_b_h')
        a('; ---- A: gather q')
        a(f's_lshl_b32 s56, s4, 14\ns_lshr_b32 s57, s5, 4\ns_lshl_b32 s57, s57, 13\ns_add_u32 s56, s56, s57\ns_add_u32 s56, s56, {QB}\ns_add_u32 s57, s56, 4096')
        a(f'v_lshrrev_b32 v3, 1, v1\nv_mul_u32_u24 v3, {QS}, v3\nv_and_b32 v4, 1, v1\nv_lshl_add_u32 v3, v4, 7, v3\nv_lshl_add_u32 v3, v2, 1, v3\nv_add_u32 v3, {L_Q}, v3')
        def qloads(b):
            for u in range(8):
                a(f'buffer_load_dwordx4 v[{b+4*u}:{b+3+4*u}], v13, s[44:47], s{56+u//4} offen offset:{(u%4)*1024} sc1')
        def qsum(b):
            for k in range(0, 8, 2):
                a(f'v_pk_add_f32 v[{b+k}:{b+k+1}], v[{b+k}:{b+k+1}], v[{b+k+8}:{b+k+9}]\nv_pk_add_f32 v[{b+k+16}:{b+k+17}], v[{b+k+16}:{b+k+17}], v[{b+k+24}:{b+k+25}]')
            for k in range(0, 8, 2):
                a(f'v_pk_add_f32 v[{16+k}:{17+k}], v[{b+k}:{b+k+1}], v[{b+k+16}:{b+k+17}]')
        a('v_mov_b32 v6, 2')
        if adel: spin_lds(O_PROG, G0['wq'] + 4 + adel, 5, sleep=1, cached=True)
        if agap:
            qloads(64)
            spin_lds(O_PROG, G0['wq'] + 4 + agap, 5, sleep=1)
            qloads(32)
            a('s_waitcnt vmcnt(8)')
            clean_check(64, 8, 4)
            branch_if_bad(4, 'L_a_chk')
            qsum(64)
            a('s_branch L_a_got')
        a('L_a_poll:')
        guard()
        qloads(32)
        a('L_a_chk:')
        a('s_waitcnt vmcnt(0)')
        clean_check(32, 8, 4)
        branch_if_bad(4, 'L_a_slow')
        a('L_a_ok:')
        qsum(32)
        a('L_a_got:')
        stamp(4)
        for hf in range(2):
            for e in (0, 2):
                r = 16 + 4 * hf + e
                a(f'v_cvt_pk_bf16_f32 v{r}, v{r}, v{r+1}')
                a(f'ds_write_b16 v3, v{r} offset:{hf*2*QS+e*32}\nds_write_b16_d16_hi v3, v{r} offset:{hf*2*QS+e*32+32}')
        a(f'v_mov_b32 v7, s52\nds_write_b64 v14, v[6:7] offset:{O_FT}')
        a('s_waitcnt lgkmcnt(0)')
        stamp(5)
        if numa: a('s_branch L_a_cal')
        else: finish()

    def sec_a_extra():
        a('L_a_slow:')
        slow_path(32, 8, 'L_a_poll')
        a('v_mov_b32 v6, 1\ns_branch L_a_ok')
        if numa:
            a('; ---- A: which of the two result copies is homed next to this XCD (speed only)')
            a('L_a_cal:')
            a(f's_lshr_b32 s56, s2, 6\ns_lshl_b32 s56, s56, 14\ns_and_b32 s57, s2, 63\ns_lshl_b32 s57, s57, 7\ns_add_u32 s56, s56, s57\ns_add_u32 s56, s56, {CAL}\ns_add_u32 s57, s56, 8192')
            a('v_mov_b32 v3, 0\ns_mov_b64 exec, 1\ns_setprio 0')
            spin_lds(O_PROG, END - 4, 5, sleep=8)
            spin_lds(O_R0, 4, 5, sleep=0)
            a('buffer_store_dword v3, v3, s[44:47], s56 offen sc1\nbuffer_store_dword v3, v3, s[44:47], s57 offen sc1')
            a('s_waitcnt vmcnt(1)\ns_memtime s[94:95]\ns_waitcnt vmcnt(0)\ns_memtime s[96:97]\ns_waitcnt lgkmcnt(0)')
            a(f's_sub_u32 s96, s96, s94\ns_cmp_gt_u32 s96, {thr}\ns_cselect_b32 s60, 1, 2\nv_mov_b32 v3, s60\nds_write_b32 v14, v3 offset:{O_R1}\ns_waitcnt lgkmcnt(0)')
            finish()

    def sec_b():
        a('L_b_gate:')
        a(f's_lshl_b32 s56, s7, 12\ns_and_b32 s57, s53, 1\ns_lshl_b32 s57, s57, 7\ns_add_u32 s56, s56, s57\ns_add_u32 s56, s56, {HB}')
        a('v_lshrrev_b32 v13, 3, v0\nv_lshlrev_b32 v13, 8, v13\nv_and_b32 v7, 7, v0\nv_lshl_add_u32 v13, v7, 4, v13')
        a('v_bfe_u32 v108, v0, 3, 1')
        a('v_and_b32 v110, 1, v1\nv_lshlrev_b32 v110, 7, v110\nv_lshl_add_u32 v110, v108, 5, v110\nv_and_b32 v109, 3, v0\nv_lshl_add_u32 v110, v109, 3, v110')
        a(f'v_lshrrev_b32 v109, 1, v1\nv_lshl_add_u32 v110, v109, 6, v110\nv_bfe_u32 v109, v0, 2, 1\nv_lshl_add_u32 v110, v109, 2, v110\nv_add_u32 v110, {L_HA}, v110')
        a('v_mov_b32 v4, 0\nv_mov_b32 v5, 0')
        a('s_waitcnt vmcnt(0)')
        for k in range(4): a(f'v_dot2c_f32_bf16 v4, v{116+k}, v{124+k}')
        for k in range(4): a(f'v_dot2c_f32_bf16 v5, v{120+k}, v{124+k}')
        a('v_permlane32_swap_b32 v4, v5\nv_add_f32 v4, v4, v5')
        a('v_mov_b32 v5, v4\nv_permlane16_swap_b32 v4, v5\nv_add_f32 v4, v4, v5')
        for s in (8, 4, 2, 1): a(f'v_add_f32_dpp v4, v4, v4 row_ror:{s} row_mask:0xf bank_mask:0xf')
        a('v_cvt_pk_bf16_f32 v4, v4, v4\nv_and_b32 v4, 0xffff0000, v4')
        a('v_mul_f32 v4, 0xbfb8aa3b, v4\nv_exp_f32 v4, v4\nv_add_f32 v4, 1.0, v4\nv_rcp_f32 v4, v4')
        a('v_cvt_pk_bf16_f32 v4, v4, v4\nv_and_b32 v4, 0xffff0000, v4')
        a('v_sub_f32 v5, 1.0, v4\nv_cvt_pk_bf16_f32 v5, v5, v5\nv_and_b32 v5, 0xffff0000, v5')
        a('v_lshrrev_b32 v6, 5, v0\nv_lshl_add_u32 v6, v6, 2, v14')
        a(f'ds_write2_b32 v6, v4, v5 offset0:{O_G//4} offset1:{O_G//4+2}')
        a(f'ds_write_b32 v14, v15 offset:{O_FG}')
        a(f'v_lshl_add_u32 v6, v108, 2, v14\nds_read_b32 v109, v6 offset:{O_G+8}')
        a('s_waitcnt lgkmcnt(0)')
        a('s_cmp_lt_u32 s5, s34\ns_cbranch_scc1 L_ab_gemv')
        count(O_GD)
        finish()
        a('L_b_slow:')
        slow_path(32, 2, 'L_b_poll')
        a('s_branch L_b_ok')
        a('L_b_h:')
        if bdel: spin_lds(O_PROG, G0['gu'] + 4 + bdel, 5, sleep=1, cached=True)
        a('L_b_poll:')
        guard()
        a('buffer_load_dwordx4 v[32:35], v13, s[44:47], s56 offen sc1\nbuffer_load_dwordx4 v[36:39], v13, s[44:47], s56 offen offset:2048 sc1')
        a('s_waitcnt vmcnt(0)')
        clean_check(32, 2, 4)
        branch_if_bad(4, 'L_b_slow')
        a('L_b_ok:')
        stamp(4)
        for r in (32, 36): a(f'v_permlane32_swap_b32 v{r}, v{r+1}\nv_permlane32_swap_b32 v{r+2}, v{r+3}')
        for r in (32, 36): a(f'v_add_f32 v{r}, v{r}, v{r+1}\nv_add_f32 v{r+2}, v{r+2}, v{r+3}')
        a('v_permlane16_swap_b32 v32, v34\nv_permlane16_swap_b32 v36, v38')
        a('v_add_f32 v32, v32, v34\nv_add_f32 v36, v36, v38')
        a('v_cvt_pk_bf16_f32 v32, v32, v36\nv_and_b32 v36, 0xffff0000, v32\nv_lshlrev_b32 v32, 16, v32')
        a('v_mul_f32 v33, 0xbfb8aa3b, v32\nv_exp_f32 v33, v33\nv_mul_f32 v36, v36, v109\nv_add_f32 v33, 1.0, v33\nv_rcp_f32 v33, v33\nv_mul_f32 v32, v32, v33')
        a('v_cvt_pk_bf16_f32 v32, v32, v32\nv_and_b32 v32, 0xffff0000, v32\nv_mul_f32 v32, v32, v36')
        a('v_cvt_pk_bf16_f32 v32, v32, v32\nds_write_b32 v110, v32')
        a(f'ds_write_b32 v14, v15 offset:{O_FB}')
        a('s_waitcnt lgkmcnt(0)')
        stamp(5)
        finish()

    def sec_att():
        a('L_att:')
        a('s_sub_u32 s3, s3, 3\ns_setprio 1\ns_lshl_b32 s55, s3, 13')
        a('v_xor_b32 v4, v1, v2\nv_lshlrev_b32 v3, 8, v2\nv_lshl_add_u32 v3, v4, 4, v3\nv_add_u32 v3, s55, v3')
        a('v_xor_b32 v4, 64, v3\nv_xor_b32 v5, 0x80, v3\nv_xor_b32 v6, 0xc0, v3')
        a(f'v_and_b32 v12, 3, v2\nv_mul_u32_u24 v13, {QS}, v12\nv_lshl_add_u32 v13, v1, 4, v13\nv_add_u32 v13, {L_Q}, v13')
        a(f's_lshl_b32 s56, s3, 6\ns_add_u32 s56, s56, {L_P}\nv_mul_u32_u24 v7, {PS}, v12\nv_lshl_add_u32 v7, v1, 3, v7\nv_add_u32 v7, s56, v7')
        a('v_lshl_add_u32 v12, v12, 2, v14')
        a(f'v_lshrrev_b32 v9, 2, v2\nv_mul_u32_u24 v8, {PS}, v9\nv_lshl_add_u32 v8, v1, 4, v8\nv_add_u32 v8, {L_P}, v8')
        a('v_lshl_add_u32 v10, v1, 3, v9\nv_lshlrev_b32 v10, 8, v10\nv_and_b32 v11, 1, v1\nv_lshl_add_u32 v9, v11, 2, v9\nv_xor_b32 v9, s3, v9\nv_lshl_add_u32 v10, v9, 5, v10')
        a(f'v_and_b32 v9, 3, v2\nv_lshl_add_u32 v10, v9, 3, v10\nv_add_u32 v10, {L_V}, v10')
        a('v_lshlrev_b32 v11, 14, v1\nv_lshl_add_u32 v11, v9, 2, v11\nv_lshrrev_b32 v72, 2, v2\nv_lshl_add_u32 v11, v72, 8, v11')
        a('s_and_b32 s57, s5, 7\ns_lshl_b32 s57, s57, 4\ns_bfe_u32 s60, s5, 0x10003\ns_lshl_b32 s60, s60, 10\ns_add_u32 s57, s57, s60\ns_lshr_b32 s60, s5, 4\ns_lshl_b32 s60, s60, 7\ns_add_u32 s57, s57, s60')
        a(f's_lshl_b32 s60, s4, 16\ns_add_u32 s57, s57, s60\ns_lshl_b32 s60, s3, 11\ns_add_u32 s57, s57, s60\ns_add_u32 s57, s57, {OB}')
        a(f's_lshl_b32 s56, s4, 5\ns_add_u32 s56, s56, s5\ns_lshl_b32 s56, s56, 6\ns_add_u32 s56, s56, {ST}')
        a('s_mov_b32 s58, 0x3db504f3\ns_mov_b32 s59, 0x3fb8aa3b')
        a('v_lshlrev_b32 v9, 3, v9\nv_mov_b32 v80, 0xfffff000\nv_lshlrev_b32 v81, 4, v1\nv_lshl_add_u32 v82, v1, 2, v14')
        a('v_mov_b32 v84, 0x3f803f80\nv_mov_b32 v85, v84\nv_mov_b32 v86, v84\nv_mov_b32 v87, v84')
        a(f's_lshl_b32 s61, s3, 1\ns_add_u32 s61, s61, {G0["k"]+2}')
        stamp(1)
        spin_lds(O_PROG, 's61', 72, sleep=2)
        stamp(2)
        for t in range(2):
            for ks in range(4):
                r = 16 + (t * 4 + ks) * 4
                a(f'ds_read_b128 v[{r}:{r+3}], v{3+ks} offset:{t*4096}')
        count(O_KD)
        spin_lds(O_FT, 1, 75, sleep=1, extra=f'ds_read_b32 v73, v14 offset:{O_TAG}')
        stamp(3)
        for ks in range(4): a(f'ds_read_b128 v[{48+4*ks}:{51+4*ks}], v13 offset:{ks*64}')
        a('v_readfirstlane_b32 s6, v75\nv_readfirstlane_b32 s52, v73\nv_alignbit_b32 v9, v73, v73, v9\nv_and_b32 v9, 0xfff, v9')
        tagwords()
        if stamps: a('s_waitcnt lgkmcnt(0)')
        for ks in range(4):
            if not stamps: a(f's_waitcnt lgkmcnt({3-ks})')
            for t in range(2):
                d = 64 + t * 4; kf = 16 + (t * 4 + ks) * 4
                cacc = '0' if ks == 0 else f'v[{d}:{d+3}]'
                a(f'v_mfma_f32_16x16x32_bf16 v[{d}:{d+3}], v[{kf}:{kf+3}], v[{48+4*ks}:{51+4*ks}], {cacc}')
        for t in range(2):
            d = 64 + t * 4
            a(f'v_cvt_pk_bf16_f32 v72, v{d}, v{d+1}\nv_cvt_pk_bf16_f32 v73, v{d+2}, v{d+3}')
            a(f'v_lshlrev_b32 v{d}, 16, v72\nv_and_b32 v{d+1}, 0xffff0000, v72\nv_lshlrev_b32 v{d+2}, 16, v73\nv_and_b32 v{d+3}, 0xffff0000, v73')
            for r in range(4): a(f'v_mul_f32 v{d+r}, s58, v{d+r}')
            a(f'v_cvt_pk_bf16_f32 v72, v{d}, v{d+1}\nv_cvt_pk_bf16_f32 v73, v{d+2}, v{d+3}')
            a(f'v_lshlrev_b32 v{d}, 16, v72\nv_and_b32 v{d+1}, 0xffff0000, v72\nv_lshlrev_b32 v{d+2}, 16, v73\nv_and_b32 v{d+3}, 0xffff0000, v73')
        a('v_max3_f32 v74, v64, v65, v66\nv_max3_f32 v74, v74, v67, v68\nv_max3_f32 v74, v74, v69, v70\nv_max_f32 v74, v74, v71')
        a('s_mov_b32 exec_lo, 0x000f000f\ns_mov_b32 exec_hi, 0x000f000f')
        a(f'ds_max_f32 v12, v74 offset:{O_MX}')
        count(O_CMAX)
        spin_lds(O_CMAX, 8, 72, sleep=0, extra=f'ds_read_b32 v74, v12 offset:{O_MX}')
        a('v_mul_f32 v74, 0xbfb8aa3b, v74')
        for r in range(8): a(f'v_fma_f32 v{64+r}, v{64+r}, s59, v74')
        for r in range(8): a(f'v_exp_f32 v{64+r}, v{64+r}')
        a('v_cvt_pk_bf16_f32 v76, v64, v65\nv_cvt_pk_bf16_f32 v77, v66, v67\nv_cvt_pk_bf16_f32 v78, v68, v69\nv_cvt_pk_bf16_f32 v79, v70, v71')
        a('s_mov_b32 exec_lo, 0x000f000f\ns_mov_b32 exec_hi, 0x000f000f')
        a('ds_write2_b64 v7, v[76:77], v[78:79] offset0:0 offset1:4')
        count(O_CL)
        spin_lds(O_CL, 8, 72, sleep=0)
        stamp(4)
        for ks in range(8): a(f'ds_read_b128 v[{16+4*ks}:{19+4*ks}], v8 offset:{ks*64}')
        a(f'ds_read_b32 v72, v14 offset:{O_PROG}\nds_read_b32 v73, v82 offset:{O_MX}')
        a('s_waitcnt lgkmcnt(0)')
        a('s_cmp_eq_u32 s3, 0\ns_cbranch_scc0 L_att_pv')
        for ks in range(8):
            cacc = '0' if ks == 0 else 'v[68:71]'
            a(f'v_mfma_f32_16x16x32_bf16 v[68:71], v[{16+4*ks}:{19+4*ks}], v[84:87], {cacc}')
        a('v_and_or_b32 v76, v73, v80, s48\nv_mov_b32 v78, s50\nv_mov_b32 v79, s51\nv_and_or_b32 v77, v68, v80, s49')
        a('s_mov_b32 exec_lo, 0x00010001\ns_mov_b32 exec_hi, 0x00010001')
        a('s_cmp_eq_u32 s6, 2\ns_cbranch_scc1 L_att_sl')
        a('buffer_store_dwordx4 v[76:79], v81, s[44:47], s56 offen sc1\ns_branch L_att_sd')
        a('L_att_sl:')
        a('buffer_store_dwordx4 v[76:79], v81, s[44:47], s56 offen')
        a('L_att_sd:')
        a('s_mov_b64 exec, -1')
        a('L_att_pv:')
        def pvmm(ks):
            r = 88 + 4 * ks
            cacc = '0' if ks == 0 else 'v[64:67]'
            a(f'v_mfma_f32_16x16x32_bf16 v[64:67], v[{16+4*ks}:{19+4*ks}], v[{r}:{r+3}], {cacc}')
        ks0 = 0; pend = []
        for ks1 in vph:
            spin_lds(O_PROG, G0['v'] + 2 * ks1, 72, sleep=0, cached=True)
            for ks in range(ks0, ks1):
                r = 88 + 4 * ks
                a(f'ds_read_b64_tr_b16 v[{r}:{r+1}], v10 offset:{ks*8192}\nds_read_b64_tr_b16 v[{r+2}:{r+3}], v10 offset:{ks*8192+1024}')
            new = list(range(ks0, ks1))
            todo = pend if pvpipe else new
            for ks in todo:
                a(f's_waitcnt lgkmcnt({2*(ks1-1-ks)})')
                pvmm(ks)
            pend = new if pvpipe else []
            ks0 = ks1
        for ks in pend:
            a(f's_waitcnt lgkmcnt({2*(7-ks)})')
            pvmm(ks)
        count(O_CO)
        a('s_cmp_eq_u32 s6, 2')
        a('v_and_or_b32 v64, v64, v80, v9')
        a('s_cbranch_scc0 L_att_g')
        a('buffer_store_dword v64, v11, s[44:47], s57 offen')
        stamp(5)
        finish()
        a('L_att_g:')
        a('buffer_store_dword v64, v11, s[44:47], s57 offen sc1')
        stamp(5)
        finish()

    def sec_c():
        sh = 14 if numa else 13
        def woread(n):
            a(f'ds_read_b128 v[{16+4*n}:{19+4*n}], v98 offset:{L_WO+n*4096}')
        def oloads():
            for u in range(2):
                a(f'buffer_load_dwordx4 v[{64+4*u}:{67+4*u}], v4, s[44:47], s62 offen offset:{u*1024} sc1')
        def sload():
            a('buffer_load_dwordx4 v[72:75], v6, s[44:47], s61 offen sc1')
        a('L_c_main:')
        a('s_sub_u32 s3, s3, 11')
        a('s_mov_b64 s[64:65], s[28:29]\ns_mov_b32 s66, 2048')
        a('s_lshl_b32 s55, s53, 2\ns_add_u32 s55, s55, s3')
        a(f's_lshl_b32 s61, s4, 11\ns_add_u32 s61, s61, {ST}')
        a(f's_lshl_b32 s62, s4, 16\ns_lshl_b32 s60, s55, 11\ns_add_u32 s62, s62, s60\ns_add_u32 s62, s62, {OB}')
        if warm:
            a('; bring the mailbox lines into L2 early')
            a('v_lshlrev_b32 v3, 7, v0\ns_sub_u32 s60, s61, 2048\nv_mov_b32 v4, s62\nv_mov_b32 v5, s60\nv_cmp_gt_u32 vcc, 16, v0\nv_cndmask_b32 v4, v5, v4, vcc\nv_add_u32 v3, v3, v4')
            a('s_mov_b32 exec_hi, 0\nbuffer_load_dword v122, v3, s[44:47], 0 offen sc1\ns_mov_b64 exec, -1')
        a('s_lshr_b32 s60, s53, 1\ns_lshl_b32 s60, s60, 4\ns_add_u32 s61, s61, s60')
        a('v_and_b32 v12, 1, v0\nv_lshlrev_b32 v12, 4, v12\nv_mov_b32 v13, 0xffff\nv_lshlrev_b32 v12, v12, v13\nv_bfe_u32 v13, v0, 1, 2')
        for k in range(4): a(f'v_cmp_eq_u32 vcc, {k}, v13\nv_cndmask_b32 v{8+k}, 0, v12, vcc')
        a('v_lshrrev_b32 v4, 3, v0\nv_and_b32 v5, 7, v0\nv_bfe_u32 v12, v0, 3, 1\nv_and_b32 v13, 1, v1\nv_lshlrev_b32 v6, 6, v5\nv_lshl_add_u32 v6, v13, 9, v6\nv_lshl_add_u32 v6, v12, 10, v6')
        a(f'v_lshlrev_b32 v126, {sh}, v4\nv_lshl_add_u32 v126, v5, 4, v126')
        a(f's_lshl_b32 s60, s3, 6\ns_add_u32 s60, s60, {L_HA}\nv_lshlrev_b32 v3, 5, v12\nv_lshl_add_u32 v3, v1, 3, v3\nv_add_u32 v3, s60, v3')
        a('v_lshl_add_u32 v72, v12, 2, v14')
        a('v_mov_b32 v124, 0xfffff000\nv_lshlrev_b32 v4, 4, v0\nv_lshlrev_b32 v125, 7, v0')
        a(f's_lshl_b32 s63, s3, 10\nv_add_u32 v98, s63, v4\nv_add_u32 v13, {L_CR}, v98\nv_xor_b32 v7, 0x400, v13\nv_xor_b32 v12, 0x800, v13\nv_xor_b32 v99, 0xc00, v13')
        a('v_and_b32 v2, 1, v1\nv_lshlrev_b32 v2, 2, v2\nv_and_b32 v1, 2, v1\nv_add_u32 v2, v2, v1')
        a(f's_lshl_b32 s59, s4, 3\ns_add_u32 s59, s59, s53\ns_lshl_b32 s58, s54, {sh+3}\ns_add_u32 s58, s58, {PB}')
        a('s_lshl_b32 s57, s59, 7\ns_add_u32 s57, s57, s58')
        a(f's_lshl_b32 s60, s4, {sh}\ns_add_u32 s58, s58, s60\ns_lshl_b32 s60, s53, 4\ns_add_u32 s58, s58, s60')
        a('s_lshr_b32 s60, s59, 5\ns_lshl_b32 s60, s60, 10\ns_lshl_b32 s63, s54, 8\ns_add_u32 s60, s60, s63\ns_and_b32 s63, s59, 15\ns_lshl_b32 s63, s63, 4\ns_add_u32 s60, s60, s63\ns_bfe_u32 s63, s59, 0x10004\ns_lshl_b32 s63, s63, 3\ns_add_u32 s60, s60, s63')
        if numa: a('s_add_u32 s56, s57, 8192\ns_add_u32 s55, s58, 8192')
        spin_lds(O_FG, 1, 127, sleep=8, extra=f'ds_read_b32 v123, v72 offset:{O_G}')
        a('v_mov_b32 v112, 0\nv_mov_b32 v113, 0')
        a('s_cmp_ge_u32 s5, s34\ns_cbranch_scc1 L_c_noh')
        spin_lds(O_FB, 1, 127, sleep=4, extra='ds_read_b64 v[112:113], v3')
        a('L_c_noh:')
        for n in range(2):
            for k in range(4): a(f'v_and_b32 v{40+4*n+k}, v{112+n}, v{8+k}')
        spin_lds(O_CL, 8, 127, sleep=4, extra=f'ds_read_b32 v97, v14 offset:{O_TAG}')
        a('v_readfirstlane_b32 s52, v97')
        tagwords()
        a('s_setprio 3')
        stamp(1)
        spin_lds(O_CO, 8, 127, sleep=cosleep, extra=f'ds_read_b32 v114, v14 offset:{O_PROG}')
        spin_lds(O_PROG, END - lead, 114, sleep=0, cached=True)
        stamp(3)
        oloads(); sload()
        if stamps: a('s_waitcnt lgkmcnt(0)')
        for n in range(2): a(f'ds_read_b128 v[{32+4*n}:{35+4*n}], v98 offset:{L_WD+n*4096}')
        nearly = 4 - lead
        for n in range(nearly): woread(n)
        for n in range(2):
            a(f's_waitcnt lgkmcnt({nearly+1-n})')
            cacc = '0' if n == 0 else 'v[100:103]'
            a(f'v_mfma_f32_16x16x32_bf16 v[100:103], v[{40+4*n}:{43+4*n}], v[{32+4*n}:{35+4*n}], {cacc}')
        def xcheck(pend):
            for u in range(2):
                a(f's_waitcnt vmcnt({pend+1-u})')
                clean_check(64 + 4 * u, 1, 5, first=(u == 0))
            a('v_and_b32 v5, 0xfff, v5\nv_cmp_ne_u32 vcc, 0, v5')
        xcheck(1)
        a('s_waitcnt vmcnt(0)\ns_mov_b64 s[70:71], vcc\ns_cbranch_vccz L_c_schk')
        a('s_mov_b64 exec, vcc')
        oloads()
        a('s_mov_b64 exec, -1\ns_branch L_c_schk')
        a('L_c_late:')
        spin_lds(O_PROG, END, 127, sleep=0)
        for n in range(nearly, 4): woread(n)
        a('s_waitcnt lgkmcnt(0)\ns_branch L_c_mm')
        a('L_c_stat:')
        guard()
        a('s_sleep 2')
        sload()
        a('s_waitcnt vmcnt(0)')
        a('L_c_schk:')
        clean_check(72, 1, 76)
        a(f'v_max_f32_dpp v96, v72, v72 {DP[0]}')
        branch_if_bad(76, 'L_c_stat', '0xfff')
        a(f'v_max_f32_dpp v96, v96, v96 {DP[1]}')
        a(f'ds_read_b32 v127, v14 offset:{O_PROG}')
        late = list(range(nearly, 4))
        def fill():
            if late: woread(late.pop(0))
        fill()
        a(f'v_max_f32_dpp v96, v96, v96 {DP[2]}')
        a('v_mov_b32 v97, v96')
        fill(); fill()
        a('v_permlane16_swap_b32 v96, v97\nv_max_f32 v96, v96, v97')
        a('v_sub_f32 v96, v72, v96\nv_mul_f32 v96, 0x3fb8aa3b, v96\nv_exp_f32 v96, v96')
        fill()
        a('v_mul_f32 v112, v96, v73\nv_mul_f32 v96, v96, v123\nv_mov_b32 v97, v96')
        a(f'v_add_f32_dpp v112, v112, v112 {DP[0]}')
        a('s_cmp_eq_u64 s[70:71], 0')
        a('v_permlane16_swap_b32 v96, v97')
        a(f'v_add_f32_dpp v112, v112, v112 {DP[1]}')
        stamp(2)
        a('s_cbranch_scc1 L_c_ook')
        a('s_mov_b64 exec, s[70:71]\ns_branch L_c_oloop')
        a('L_c_oy:')
        a('s_mov_b64 exec, vcc')
        guard()
        oloads()
        a('L_c_oloop:')
        xcheck(0)
        a('s_cbranch_vccnz L_c_oy')
        a('s_mov_b64 exec, -1')
        a('L_c_ook:')
        stamp(4)
        for e in range(2): a(f'v_mul_f32 v{104+e}, v96, v{64+e}')
        a(f'v_add_f32_dpp v112, v112, v112 {DP[2]}')
        for e in range(2, 4): a(f'v_mul_f32 v{104+e}, v96, v{64+e}')
        a('v_mov_b32 v113, v112')
        for e in range(4): a(f'v_fmac_f32 v{104+e}, v97, v{68+e}')
        a('v_permlane16_swap_b32 v112, v113')
        for k, d in enumerate(DP):
            for e in range(4): a(f'v_add_f32_dpp v{104+e}, v{104+e}, v{104+e} {d}')
            if k == 0: a('v_add_f32 v112, v112, v113')
            if k == 1: a('v_rcp_f32 v112, v112')
        for e in range(4): a(f'v_mul_f32 v{104+e}, v{104+e}, v112')
        if numa: count(O_R0)
        for e in range(4): a(f'v_cvt_pk_bf16_f32 v{104+e}, v{104+e}, v{104+e}')
        def ands(n):
            d = 116 + 4 * (n & 1)
            for k in range(4): a(f'v_and_b32 v{d+k}, v{104+n}, v{8+k}')
        ands(0)
        a(f's_waitcnt lgkmcnt({1 if numa and not stamps else 0})')
        a(f'v_cmp_gt_i32 vcc, {END}, v127\ns_cbranch_vccnz L_c_late')
        a('L_c_mm:')
        for n in range(4):
            if n < 3: ands(n + 1)
            d = 116 + 4 * (n & 1)
            a(f'v_mfma_f32_16x16x32_bf16 v[100:103], v[{d}:{d+3}], v[{16+4*n}:{19+4*n}], v[100:103]')
        a('ds_write_b128 v13, v[100:103]')
        count(O_CC, rtn=127)
        a('ds_read_b128 v[104:107], v7\nds_read_b128 v[108:111], v12\nds_read_b128 v[112:115], v99')
        a('s_waitcnt lgkmcnt(2)')
        a('v_readfirstlane_b32 s63, v127')
        a('v_pk_add_f32 v[104:105], v[104:105], v[100:101]\nv_pk_add_f32 v[106:107], v[106:107], v[102:103]')
        a('s_cmp_eq_u32 s63, 3\ns_cbranch_scc0 L_c_end')
        a('s_waitcnt lgkmcnt(0)')
        a('v_pk_add_f32 v[108:109], v[108:109], v[112:113]\nv_pk_add_f32 v[110:111], v[110:111], v[114:115]')
        a('v_pk_add_f32 v[104:105], v[104:105], v[108:109]\nv_pk_add_f32 v[106:107], v[106:107], v[110:111]')
        for k in range(4): a(f'v_and_or_b32 v{104+k}, v{104+k}, v124, s{48+k}')
        a('buffer_store_dwordx4 v[104:107], v126, s[44:47], s57 offen sc1')
        if numa:
            a('buffer_store_dwordx4 v[104:107], v126, s[44:47], s56 offen sc1')
            spin_lds(O_R1, 1, 108, sleep=1)
            a('v_cmp_eq_u32 vcc, 1, v108\ns_cmp_lg_u64 vcc, 0\ns_cselect_b32 s58, s58, s55')
        stamp(5)
        a('s_waitcnt vmcnt(0)\ns_branch L_c_fp1')
        a('L_c_fpoll:')
        a('s_mov_b64 exec, vcc')
        guard()
        a('L_c_fp1:')
        a('buffer_load_dwordx4 v[64:67], v125, s[44:47], s58 offen sc1')
        a('s_waitcnt vmcnt(0)')
        clean_check(64, 1, 5)
        branch_if_bad(5, 'L_c_fpoll', '0xfff')
        a('s_mov_b64 exec, -1')
        stamp(6)
        a('v_permlane32_swap_b32 v64, v65\nv_permlane32_swap_b32 v66, v67\nv_add_f32 v64, v64, v65\nv_add_f32 v66, v66, v67')
        a('v_permlane16_swap_b32 v64, v66\nv_add_f32 v64, v64, v66')
        for s in (8, 4, 2, 1): a(f'v_add_f32_dpp v64, v64, v64 row_ror:{s} row_mask:0xf bank_mask:0xf')
        a('v_cvt_pk_bf16_f32 v64, v64, v64')
        a('s_mov_b32 exec_lo, 0x00010001\ns_mov_b32 exec_hi, 0x00010001')
        a('buffer_store_short v64, v2, s[64:67], s60 offen')
        a('s_cmp_eq_u32 s2, 0\ns_cbranch_scc0 L_c_end')
        a('; every workgroup has used the tag by now: it becomes the next launch\'s epoch')
        a('s_mov_b64 exec, 1\nv_mov_b32 v4, s52\nv_mov_b32 v5, 0\nbuffer_store_dword v4, v5, s[44:47], 0 offen')
        a('L_c_end:')
        stamp(7)

    def sec_fin():
        a('L_fin:')
        a('s_mov_b64 exec, -1\ns_waitcnt lgkmcnt(0) vmcnt(0)')
        a('s_memrealtime s[90:91]\ns_getreg_b32 s92, hwreg(HW_REG_XCC_ID)\ns_waitcnt lgkmcnt(0)')
        if not ampall:
            for k in range(11): a(f'v_writelane_b32 v4, s{72+2*k}, {k}')
            a('v_writelane_b32 v4, s68, 11\ns_getreg_b32 s93, hwreg(HW_REG_HW_ID)\nv_writelane_b32 v4, s93, 12')
            a(f's_mul_i32 s60, s2, {NW}\ns_add_u32 s60, s60, s69\ns_lshl_b32 s60, s60, 6\ns_add_u32 s60, s60, {STAMP}')
            a('v_lshlrev_b32 v3, 2, v0\nv_add_u32 v3, s60, v3\ns_mov_b64 exec, 0xffff\nglobal_store_dword v3, v4, s[32:33]')
        else:
            a(f's_cmp_eq_u32 s69, 0\ns_cbranch_scc0 L_am1\ns_lshl_b32 s60, s2, 2\ns_add_u32 s60, s60, {STAMP}\nv_mov_b32 v3, s60\nv_mov_b32 v5, s72\ns_mov_b64 exec, 1\nglobal_store_dword v3, v5, s[32:33] sc1\ns_endpgm')
            a('L_am1:')
            a('s_cmp_eq_u32 s2, 0\ns_cbranch_scc0 L_abort\ns_cmp_ge_u32 s69, 11\ns_cbranch_scc0 L_abort')
            a(f's_sleep 100\nv_lshlrev_b32 v3, 4, v0\nv_add_u32 v3, {STAMP}, v3\nglobal_load_dwordx4 v[8:11], v3, s[32:33] sc1\ns_waitcnt vmcnt(0)')
            a('v_subrev_u32 v8, s72, v8\nv_subrev_u32 v9, s72, v9\nv_subrev_u32 v10, s72, v10\nv_subrev_u32 v11, s72, v11\nv_min3_i32 v8, v8, v9, v10\nv_min_i32 v8, v8, v11\nv_max_i32 v8, 0xfffffe00, v8')
            a('s_mov_b32 s61, 0\ns_mov_b32 s62, 0\nL_am2:\ns_nop 4\nv_readlane_b32 s63, v8, s62\ns_nop 4\ns_min_i32 s61, s61, s63\ns_add_u32 s62, s62, 1\ns_cmp_lt_u32 s62, 64\ns_cbranch_scc1 L_am2')
            if ampsel == 'xcc': a('s_and_b32 s60, s92, 7\ns_mul_i32 s60, s60, 100\ns_add_u32 s90, s72, s60\ns_add_u32 s90, s90, s61')
            elif ampsel is not None:
                a(f'v_mov_b32 v3, {STAMP+4*ampsel}\nglobal_load_dword v9, v3, s[32:33] sc1\ns_waitcnt vmcnt(0)\nv_readfirstlane_b32 s60, v9\ns_nop 4\ns_sub_u32 s60, s60, s72\ns_sub_u32 s60, s60, s61\ns_mul_i32 s60, s60, 10\ns_add_u32 s90, s72, s60\ns_add_u32 s90, s90, s61')
            a('s_sub_u32 s60, s90, s72\ns_sub_u32 s60, s60, s61\ns_mul_i32 s60, s60, 10\ns_min_u32 s60, s60, 100000\ns_add_u32 s60, s60, 2000\ns_add_u32 s60, s60, s61')
            a('L_am3:\ns_memrealtime s[62:63]\ns_waitcnt lgkmcnt(0)\ns_sub_u32 s62, s62, s72\ns_cmp_lt_u32 s62, s60\ns_cbranch_scc1 L_am3')

    a.raw(HDR.rstrip('\n'))
    a.raw(f'; @launch grid=(256,1,1) block=({NW*64},1,1) lds={LDS_BYTES}')
    a.raw(DOC)
    a.raw('.amdgcn_target "amdgcn-amd-amdhsa--gfx950"')
    a.raw('.text\n.p2align 12')
    a('L_first:')
    sec_att(); sec_b(); sec_a_extra()
    a.raw('.fill (0xd00 - (. - L_first)) / 4, 4, 0xbf810000')
    a.raw(f'.globl {KN}\n.p2align 8\n.type {KN},@function\n{KN}:')
    a.flush_hist()
    if split:
        sec_entry()
        a('L_loader:')
        a(f's_getreg_b32 s60, hwreg(HW_REG_XCC_ID, 0, 3)\ns_bitcmp1_b32 {split[0]}, s60\ns_cbranch_scc1 L_loader2')
        Ws = 36
        W, Wv = split[1], split[2]
        sec_loader('L_loader1')
        sec_ab()
        a.raw('.p2align 12')
        W, Wv = split[3], split[4]
        sec_loader('L_loader2')
    else:
        sec_entry(); sec_loader(); sec_ab()
    a.raw('.p2align 12')
    sec_c()
    if fin: sec_fin()
    a('L_abort:')
    a('s_endpgm')
    a.raw('.section .rodata,"a"\n.p2align 6')
    a.raw(f'.amdhsa_kernel {KN}')
    a.raw('  .amdhsa_next_free_vgpr 128\n  .amdhsa_next_free_sgpr 102\n  .amdhsa_accum_offset 128\n  .amdhsa_group_segment_fixed_size 0\n  .amdhsa_kernarg_size 104')
    a.raw('  .amdhsa_user_sgpr_count 2\n  .amdhsa_user_sgpr_kernarg_segment_ptr 1\n  .amdhsa_system_sgpr_workgroup_id_x 1\n.end_amdhsa_kernel')
    txt = a.text()
    if fin:
        z = ''.join(f'    s_mov_b32 s{74+2*k}, 0\n' for k in range(8)) if stamps else ''
        txt = txt.replace('    v_readfirstlane_b32 s3, v1\n', '    v_readfirstlane_b32 s3, v1\n    s_nop 1\n    s_mov_b32 s69, s3\n' + z, 1)
    return txt

if __name__ == '__main__':
    kw = eval('dict(%s)' % (sys.argv[2] if len(sys.argv) > 2 else ''))
    open(sys.argv[1], 'w').write(gen(**kw))
```

```python
import sys, os
sys.path.insert(0, 'tools')
from asmlib import Asm

KN = 'gated_mix__sliding_block_cached__swiglu_ffn__decode_kernel'
REF = 'gated_mix__sliding_block_cached__swiglu_ffn__decode.s.ref'
HDR = open(REF).read().split('; Override launch')[0] if os.path.exists(REF) else ''

QB, HB, ST, OB, PB, CAL = 0x10000, 0x30000, 0x50000, 0x60000, 0x100000, 0x180000
WS_SPAN = 0x200000
STAMP = 0x8000000
L_V = 65536
L_GU = L_V + 49152
L_WD, L_WO = 16384, 24576
L_Q = 131072
QS, PS = 320, 576
L_P = L_Q + 1280
L_MISC = L_P + 2304
O_MX = 0
O_PROG, O_CMAX, O_CL, O_KD, O_CO, O_FB, O_FG, O_CC = [32 + 4 * k for k in range(8)]
O_FT, O_TAG, O_G = 64, 68, 72
O_GD, O_R0, O_R1 = 96, 104, 108
L_HA = L_MISC + 256
L_CR = L_Q + 4096
assert L_HA + 256 <= L_CR
L_WQ = L_CR + 4096
LDS_BYTES = L_WQ + 16384
NW = 15
ROLES = [('A', [1]), ('B', [2]), ('L', [0]), ('att', list(range(3, 11))), ('C', [11, 12, 13, 14])]

DOC = '''; ---------------------------------------------------------------------------------------------
; One launch, 256 workgroups (one per CU), 15 waves each.  wg = 8*i + G, G = kv head.
;   wave 0      loader : streams wq tile, gate/up tile, K chunk, V chunk, w_down tile, wo tile into LDS
;   wave 1 (A)  x@wq tile -> partial q to the group, gathers q for (batch, 4 heads)
;   waves 11-14 merge the 16 chunk partials per batch (max/sum rescale), times wo rows (+ FFN rows),
; epoch word at d_ws[0]; stores stay in the XCD L2 only when the whole group reported the same XCD.
; ---------------------------------------------------------------------------------------------'''

def gen(ampall=False, light=False, stamps=False, limit=1 << 22, pol='nt', W=36, Ws=None, Wv=None, We=28, rot=1,
        vph=(6, 8), force_global=False, ktry=6, agap=4, order=('wq', 'gu', 'k', 'v', 'wd', 'wo'), lead=3, thr=64,
        pvpipe=False, cosleep=0, numa=True, warm=True, wpol=None, adel=0, bdel=3, split=None, nblk=(4, 3, 4, 3, 4, 3, 4, 3), ampsel=None):
    a = Asm()
    fin = stamps or light
    if light: stamps = False
    wpol = pol if wpol is None else wpol
    NG = dict(wq=4, k=16, v=16, gu=4, wd=2, wo=4)
    G0 = {}; n = 0
    for ph in order: G0[ph] = n; n += NG[ph]
    END = n
    assert order.index('gu') < order.index('v') and 1 <= lead <= 4
    DP = [d + ' row_mask:0xf bank_mask:0xf' for d in ('quad_perm:[1,0,3,2]', 'quad_perm:[2,3,0,1]', 'row_half_mirror')]
    uid = [0]

    def stamp(k):
        if stamps or (fin and k == 0): a(f's_memrealtime s[{72+2*k}:{73+2*k}]')
    def guard():
        a(f's_add_u32 s68, s68, 1\ns_cmp_gt_u32 s68, {limit}\ns_cbranch_scc1 L_abort')
    def spin_lds(off, val, tmp, sleep=1, extra=None, cached=False):
        uid[0] += 1; n = uid[0]
        a(f's_branch L_sp{n}c' if cached else f's_branch L_sp{n}b')
        a(f'L_sp{n}:')
        guard()
        if sleep: a(f's_sleep {sleep}')
        a(f'L_sp{n}b:')
        a(f'ds_read_b32 v{tmp}, v14 offset:{off}')
        if extra: a(extra)
        a('s_waitcnt lgkmcnt(0)')
        if cached: a(f'L_sp{n}c:')
        a(f'v_cmp_gt_i32 vcc, {val}, v{tmp}')
        a(f's_cbranch_vccnz L_sp{n}')
    def tagbytes():
        a('s_and_b32 s48, s52, 0xf8\ns_bfe_u32 s49, s52, 0x80008\ns_bfe_u32 s50, s52, 0x80010\ns_lshr_b32 s51, s52, 24')
    def tagwords():
        a('s_and_b32 s48, s52, 0xfff\ns_bfe_u32 s49, s52, 0xc0008\ns_bfe_u32 s50, s52, 0xc0010\ns_and_b32 s51, s52, 15\ns_lshl_b32 s51, s51, 8\ns_lshr_b32 s35, s52, 24\ns_or_b32 s51, s51, s35')
    def clean_check(base, nload, vor, first=True):
        for u in range(nload):
            r = base + 4 * u
            for e in range(4):
                a(f'v_xor_b32 v{r+e}, s{48+e}, v{r+e}')
            if first and u == 0:
                a(f'v_or3_b32 v{vor}, v{r}, v{r+1}, v{r+2}\nv_or_b32 v{vor}, v{vor}, v{r+3}')
            else:
                a(f'v_or3_b32 v{vor}, v{vor}, v{r}, v{r+1}\nv_or3_b32 v{vor}, v{vor}, v{r+2}, v{r+3}')
    def branch_if_bad(vor, label, m='0xff'):
        a(f'v_and_b32 v{vor}, {m}, v{vor}\nv_cmp_ne_u32 vcc, 0, v{vor}\ns_cbranch_vccnz {label}')
    def slow_path(base, nload, retry):
        a(f's_add_u32 s70, s70, 1\ns_cmp_lt_u32 s70, {ktry}\ns_cbranch_scc1 {retry}')
        a('s_mov_b32 exec_hi, 0\nbuffer_store_dwordx4 v[112:115], v111, s[44:47], s71 offen sc1\ns_mov_b64 exec, -1')
        a('v_mov_b32 v4, 0')
        for u in range(nload):
            r = base + 4 * u
            a(f'v_and_b32 v{r}, -8, v{r}\nv_or3_b32 v4, v4, v{r}, v{r+1}\nv_or3_b32 v4, v4, v{r+2}, v{r+3}')
        branch_if_bad(4, retry)
    def finish():
        a('s_branch L_fin' if fin else 's_endpgm')
    def count(off, rtn=None):
        op = f'ds_add_rtn_u32 v{rtn}, v14, v15' if rtn else 'ds_add_u32 v14, v15'
        a(f's_mov_b64 exec, 1\n{op} offset:{off}\ns_mov_b64 exec, -1')

    def sec_entry():
        stamp(0)
        a('s_load_dwordx16 s[8:23], s[0:1], 0\ns_load_dwordx8 s[24:31], s[0:1], 64\ns_load_dwordx2 s[32:33], s[0:1], 96')
        a('s_cmp_ge_u32 s2, 256\ns_cbranch_scc1 L_exit')
        a('v_lshrrev_b32 v1, 6, v0\nv_and_b32 v0, 63, v0')
        a('s_and_b32 s4, s2, 7\ns_lshr_b32 s5, s2, 3')
        a('v_readfirstlane_b32 s3, v1')
        a('v_lshrrev_b32 v1, 4, v0\nv_and_b32 v2, 15, v0')
        a(f'v_mov_b32 v14, {L_MISC}\nv_mov_b32 v15, 1')
        a('s_mov_b32 s39, 0x20000\ns_mov_b32 s43, 0x20000\ns_mov_b32 s47, 0x20000\ns_mov_b32 s67, 0x20000')
        a(f's_mov_b32 s46, {WS_SPAN}\ns_mov_b32 s68, 0')
        a('; s7 = FFN 64-column block, s34 = workgroups of this group with FFN work, s54 = i&3, s53 = i>>2')
        assert sum(nblk) == 28 and max(nblk) <= 4
        cn = sum(n << (4 * g) for g, n in enumerate(nblk))
        cd = sum((4 * g - sum(nblk[:g])) << (4 * g) for g in range(8))
        a(f's_lshl_b32 s53, s4, 2\ns_lshr_b32 s7, {hex(cd)}, s53\ns_and_b32 s7, s7, 15\ns_sub_u32 s7, s53, s7\ns_lshr_b32 s34, s5, 3\ns_add_u32 s7, s7, s34')
        a(f's_lshr_b32 s34, {hex(cn)}, s53\ns_and_b32 s34, s34, 15\ns_lshl_b32 s34, s34, 3')
        a('s_and_b32 s54, s5, 3\ns_lshr_b32 s53, s5, 2')
        a('s_cmp_eq_u32 s3, 0\ns_cbranch_scc1 L_loader')
        a('s_cmp_eq_u32 s3, 3\ns_cbranch_scc0 L_rest1')
        a('s_getpc_b64 s[60:61]')
        a('L_pc:')
        a('s_sub_u32 s60, s60, L_pc-L_first\ns_subb_u32 s61, s61, 0')
        a('v_lshlrev_b32 v3, 7, v0\nglobal_load_dword v122, v3, s[60:61]')
        a('v_add_u32 v3, 0x2000, v3\nv_min_u32 v3, L_abort-L_first, v3\ns_mov_b32 exec_hi, 0\nglobal_load_dword v123, v3, s[60:61]\ns_mov_b64 exec, -1')
        a('L_rest1:')
        a('s_waitcnt lgkmcnt(0)')
        a('s_mov_b64 s[44:45], s[32:33]')
        a('s_cmp_gt_u32 s3, 2\ns_cbranch_scc0 L_ab')
        a('s_barrier')
        a('s_cmp_lt_u32 s3, 11\ns_cbranch_scc1 L_att')
        a('s_branch L_c_main')
        a('L_exit:')
        a('s_endpgm')
        a('L_ab:')
        a('s_load_dword s52, s[32:33], 0')
        a('s_setprio 3')
        a('s_mov_b64 s[64:65], s[8:9]\ns_mov_b32 s66, 2048\ns_lshl_b32 s59, s54, 8')
        a('v_bfe_u32 v7, v2, 2, 1\nv_lshlrev_b32 v7, 10, v7\nv_lshl_add_u32 v7, v1, 4, v7\nv_lshlrev_b32 v13, 4, v0')
        for ks in range(4):
            a(f'buffer_load_dwordx4 v[{16+4*ks}:{19+4*ks}], v7, s[64:67], s59 offen offset:{ks*64}')
        a('s_cmp_eq_u32 s3, 1\ns_cbranch_scc1 L_ab1')
        a('s_mov_b64 s[40:41], s[26:27]\ns_mov_b32 s42, 1024')
        a('buffer_load_dwordx4 v[116:119], v13, s[64:67], 0 offen\nbuffer_load_dwordx4 v[120:123], v13, s[64:67], 0 offen offset:1024\nbuffer_load_dwordx4 v[124:127], v13, s[40:43], 0 offen')
        a('L_ab1:')
        a('s_barrier')
        a('s_branch L_ab2')

    def sec_loader(lab='L_loader'):
        nonlocal Ws, We
        a(lab + ':')
        a('s_setprio 2')
        a('v_mov_b32 v8, 0xff800000\nv_cmp_gt_u32 vcc, 4, v0\nv_lshl_add_u32 v3, v0, 2, v14\nv_cndmask_b32 v4, 0, v8, vcc\nds_write_b32 v3, v4')
        a('v_lshrrev_b32 v10, 3, v0\nv_and_b32 v11, 1, v1\nv_lshlrev_b32 v11, 1, v11\nv_and_b32 v12, 7, v0\nv_xor_b32 v11, v11, v12\nv_lshlrev_b32 v11, 4, v11')
        def tile_voff(stride):
            d = 8 * stride - 1024
            a(f'v_mul_u32_u24 v3, {stride}, v10\nv_add_u32 v3, v3, v11\nv_xor_b32 v4, 64, v3\nv_add_u32 v4, {d}, v4\nv_add_u32 v5, {2*d}, v3\nv_add_u32 v6, {2*d}, v4')
        def setup(ph):
            a(f'; ---- {ph}')
            if ph == 'wq':
                tile_voff(8192)
                a('s_lshl_b32 s56, s4, 3\ns_add_u32 s56, s56, s53\ns_lshl_b32 s57, s54, 13\ns_add_u32 s56, s56, s57\ns_lshl_b32 s56, s56, 7')
                return 's[14:15]', 0x400000, L_WQ, 32 * 8192
            if ph == 'gu':
                tile_voff(3584)
                a('s_mul_i32 s56, s54, 3584\ns_add_u32 s56, s56, s7\ns_lshl_b32 s56, s56, 7')
                return None, 1835008, L_GU, 32 * 3584
            if ph == 'k':
                a('s_lshr_b32 s60, s5, 4\ns_lshl_b32 s61, s60, 3\ns_add_u32 s61, s61, s4\ns_lshl_b32 s61, s61, 22')
                a('s_and_b32 s57, s5, 15\ns_lshl_b32 s62, s57, 16\ns_add_u32 s61, s61, s62\ns_add_u32 s61, s61, 0x300000')
                a(f's_mul_i32 s55, s57, {rot*4096}')
                a('v_xor_b32 v3, v1, v2\nv_lshlrev_b32 v3, 4, v3\nv_lshl_add_u32 v3, v1, 8, v3')
                a('v_xor_b32 v4, 64, v3\nv_xor_b32 v5, 0x80, v3\nv_xor_b32 v6, 0xc0, v3')
                return 's[10:11]', 0x4000000, 0, None
            if ph == 'v':
                a('v_lshlrev_b32 v3, 1, v1\nv_xor_b32 v3, v3, v2\nv_lshlrev_b32 v3, 4, v3\nv_lshl_add_u32 v3, v1, 8, v3')
                a('v_mov_b32 v4, v3\nv_xor_b32 v5, 0x80, v3\nv_xor_b32 v6, 0x80, v3')
                return 's[12:13]', 0x4000000, L_V, None
            if ph == 'wd':
                a('v_lshlrev_b32 v3, 10, v1\nv_lshl_add_u32 v3, v2, 4, v3\nv_add_u32 v4, 15360, v3\nv_add_u32 v5, 30720, v3\nv_add_u32 v6, 46080, v3')
                a('s_lshl_b32 s56, s7, 6\ns_and_b32 s57, s53, 1\ns_lshl_b32 s57, s57, 3\ns_add_u32 s56, s56, s57\ns_lshl_b32 s56, s56, 10\ns_lshl_b32 s57, s54, 8\ns_add_u32 s56, s56, s57')
                return 's[24:25]', 1835008, L_WD, 4096
            if ph == 'wo':
                a('v_lshlrev_b32 v3, 12, v1\nv_lshl_add_u32 v3, v2, 4, v3\nv_add_u32 v4, 15360, v3\nv_add_u32 v5, 30720, v3\nv_add_u32 v6, 46080, v3')
                a('s_lshl_b32 s56, s4, 3\ns_add_u32 s56, s56, s53\ns_lshl_b32 s56, s56, 16\ns_lshl_b32 s57, s54, 8\ns_add_u32 s56, s56, s57')
                return 's[16:17]', 0x400000, L_WO, 1024
        Ws = W if Ws is None else Ws
        We = W if We is None else We
        nb = Ws // 4
        known = [0]
        def signal(issued, upto):
            while known[0] < upto:
                known[0] += 1
                a(f'v_mov_b32 v9, {known[0]}\ns_waitcnt vmcnt({4*(issued-known[0])})\nds_write_b32 v14, v9 offset:{O_PROG}')
                if known[0] == G0['v'] + 16: stamp(3)
        first = True; kd_checked = False
        for ph in order:
            ptr, size, lds, gstep = setup(ph)
            a(f's_mov_b32 s38, {size}\ns_mov_b32 m0, {lds}')
            if first: a('s_waitcnt lgkmcnt(0)'); first = False
            if ph == 'gu': a('s_bitcmp0_b32 s5, 2\ns_cselect_b64 s[36:37], s[20:21], s[22:23]')
            else: a(f's_mov_b64 s[36:37], {ptr}')
            if ph in ('gu', 'wd'): a('s_cmp_lt_u32 s5, s34\ns_cselect_b32 s38, s38, 0')
            if lds < L_V and ph != 'k' and not kd_checked:
                spin_lds(O_KD, 8, 12, sleep=0); kd_checked = True
            p = pol if ph in ('k', 'v') else wpol
            win = (We if G0[ph] > G0['v'] else (Wv or W) if ph == 'v' else W) // 4
            g = G0[ph]; gend = g + NG[ph]
            while g < gend:
                free = nb if g < nb else known[0] + win
                waits = g >= free
                e = gend if waits else min(gend, free)
                if ph == 'v' and g < G0['v'] + 12: e = min(e, G0['v'] + 12)
                if waits:
                    signal(g, g - win)
                    a(f'v_mov_b32 v9, {known[0]}')
                uid[0] += 1; lid = uid[0]
                if e - g > 1: a(f'L_ld{lid}:')
                if gstep is None: a('s_and_b32 s55, s55, 0xffff\ns_add_u32 s56, s61, s55')
                if waits: a(f'v_add_u32 v9, 1, v9\ns_waitcnt vmcnt({4*win-4})\nds_write_b32 v14, v9 offset:{O_PROG}')
                for j in range(4):
                    a(f'buffer_load_dwordx4 v{3+j}, s[36:39], s56 offen offset:{j*1024} {p} lds')
                a('s_add_u32 s55, s55, 4096' if gstep is None else f's_add_u32 s56, s56, {gstep}')
                a('s_add_u32 m0, m0, 4096')
                if e - g > 1: a(f's_cmp_lt_u32 m0, {lds + (e-G0[ph])*4096}\ns_cbranch_scc1 L_ld{lid}')
                if waits: known[0] += e - g
                g = e
                if g == nb: a('s_waitcnt lgkmcnt(0)\ns_barrier')
                if ph == 'v' and g == G0['v'] + 12: spin_lds(O_GD, 2, 12, sleep=0)
            if ph == 'k': stamp(1)
            if ph == 'v': stamp(2)
        stamp(4)
        signal(END, END)
        stamp(5)
        a('s_waitcnt lgkmcnt(0)')
        finish()

    def sec_ab():
        a('L_ab2:')
        a('s_cmp_eq_u32 s3, 1')
        a(f's_mov_b32 s55, {L_GU}\ns_cselect_b32 s55, {L_WQ}, s55\ns_cselect_b32 s61, {G0["wq"]+1}, {G0["gu"]+1}')
        a('v_lshrrev_b32 v8, 2, v2\nv_lshl_add_u32 v8, v1, 3, v8\nv_lshlrev_b32 v8, 7, v8')
        a('v_and_b32 v9, 3, v2\nv_lshl_add_u32 v8, v9, 3, v8\nv_add_u32 v8, s55, v8')
        a('v_lshrrev_b32 v9, 3, v2\nv_and_b32 v10, 1, v1\nv_lshl_add_u32 v9, v10, 1, v9')
        a('v_lshl_add_u32 v8, v9, 5, v8')
        a('v_xor_b32 v9, 32, v8\nv_xor_b32 v10, 64, v8\nv_xor_b32 v11, 0x60, v8')
        a('v_mov_b32 v12, 0xffffff00')
        a(f's_lshl_b32 s56, s4, 14\ns_lshl_b32 s57, s54, 11\ns_add_u32 s56, s56, s57\ns_lshl_b32 s57, s53, 8\ns_add_u32 s56, s56, s57\ns_add_u32 s56, s56, {QB}')
        a(f's_lshl_b32 s57, s7, 12\ns_and_b32 s58, s5, 7\ns_lshl_b32 s58, s58, 9\ns_add_u32 s57, s57, s58\ns_add_u32 s57, s57, {HB}')
        a('s_cmp_eq_u32 s3, 1\ns_cselect_b32 s71, s56, s57\ns_cselect_b32 s57, 13, 8')
        a('v_lshlrev_b32 v111, s57, v1\nv_lshl_add_u32 v111, v2, 4, v111')
        a('s_getreg_b32 s60, hwreg(HW_REG_XCC_ID, 0, 3)\ns_mov_b32 s70, 0')
        if force_global: a('s_add_u32 s60, s60, s5\ns_and_b32 s60, s60, 7')
        a('s_waitcnt lgkmcnt(0)')
        a('s_add_u32 s52, s52, 0x01010108')
        tagbytes()
        a('s_or_b32 s48, s48, s60')
        a('s_cmp_eq_u32 s3, 1\ns_cbranch_scc0 L_b_gate')
        a('L_ab_gemv:')
        stamp(1)
        a('v_mov_b32 v5, -1\ns_waitcnt vmcnt(0)')
        for ks in range(4):
            spin_lds(O_PROG, 's61', 5, sleep=0 if ks else 1, cached=True)
            for t in range(4):
                for h in range(2):
                    r = 32 + t * 4 + 2 * h + (ks & 1) * 16
                    a(f'ds_read_b64_tr_b16 v[{r}:{r+1}], v{8+t} offset:{ks*4096+h*512}')
            a('s_add_u32 s61, s61, 1')
            for t in range(4):
                a(f's_waitcnt lgkmcnt({6-2*t})')
                r = 32 + t * 4 + (ks & 1) * 16
                cacc = '0' if ks == 0 else f'v[{92+4*t}:{95+4*t}]'
                a(f'v_mfma_f32_16x16x32_bf16 v[{92+4*t}:{95+4*t}], v[{16+4*ks}:{19+4*ks}], v[{r}:{r+3}], {cacc}')
        stamp(2)
        count(O_GD)
        for t in range(4):
            a(f'v_add_u32 v{112+t}, 0x80, v{92+4*t}')
        for t in range(4):
            a(f'v_and_or_b32 v{112+t}, v{112+t}, v12, s{48+t}')
        a('s_mov_b32 exec_hi, 0\nbuffer_store_dwordx4 v[112:115], v111, s[44:47], s71 offen\ns_mov_b64 exec, -1')
        stamp(3)
        a('s_cmp_eq_u32 s3, 1\ns_cbranch_scc0 L_b_h')
        a('; ---- A: gather q')
        a(f's_lshl_b32 s56, s4, 14\ns_lshr_b32 s57, s5, 4\ns_lshl_b32 s57, s57, 13\ns_add_u32 s56, s56, s57\ns_add_u32 s56, s56, {QB}\ns_add_u32 s57, s56, 4096')
        a(f'v_lshrrev_b32 v3, 1, v1\nv_mul_u32_u24 v3, {QS}, v3\nv_and_b32 v4, 1, v1\nv_lshl_add_u32 v3, v4, 7, v3\nv_lshl_add_u32 v3, v2, 1, v3\nv_add_u32 v3, {L_Q}, v3')
        def qloads(b):
            for u in range(8):
                a(f'buffer_load_dwordx4 v[{b+4*u}:{b+3+4*u}], v13, s[44:47], s{56+u//4} offen offset:{(u%4)*1024} sc1')
        def qsum(b):
            for k in range(0, 8, 2):
                a(f'v_pk_add_f32 v[{b+k}:{b+k+1}], v[{b+k}:{b+k+1}], v[{b+k+8}:{b+k+9}]\nv_pk_add_f32 v[{b+k+16}:{b+k+17}], v[{b+k+16}:{b+k+17}], v[{b+k+24}:{b+k+25}]')
            for k in range(0, 8, 2):
                a(f'v_pk_add_f32 v[{16+k}:{17+k}], v[{b+k}:{b+k+1}], v[{b+k+16}:{b+k+17}]')
        a('v_mov_b32 v6, 2')
        if adel: spin_lds(O_PROG, G0['wq'] + 4 + adel, 5, sleep=1, cached=True)
        if agap:
            qloads(64)
            spin_lds(O_PROG, G0['wq'] + 4 + agap, 5, sleep=1)
            qloads(32)
            a('s_waitcnt vmcnt(8)')
            clean_check(64, 8, 4)
            branch_if_bad(4, 'L_a_chk')
            qsum(64)
            a('s_branch L_a_got')
        a('L_a_poll:')
        guard()
        qloads(32)
        a('L_a_chk:')
        a('s_waitcnt vmcnt(0)')
        clean_check(32, 8, 4)
        branch_if_bad(4, 'L_a_slow')
        a('L_a_ok:')
        qsum(32)
        a('L_a_got:')
        stamp(4)
        for hf in range(2):
            for e in (0, 2):
                r = 16 + 4 * hf + e
                a(f'v_cvt_pk_bf16_f32 v{r}, v{r}, v{r+1}')
                a(f'ds_write_b16 v3, v{r} offset:{hf*2*QS+e*32}\nds_write_b16_d16_hi v3, v{r} offset:{hf*2*QS+e*32+32}')
        a(f'v_mov_b32 v7, s52\nds_write_b64 v14, v[6:7] offset:{O_FT}')
        a('s_waitcnt lgkmcnt(0)')
        stamp(5)
        if numa: a('s_branch L_a_cal')
        else: finish()

    def sec_a_extra():
        a('L_a_slow:')
        slow_path(32, 8, 'L_a_poll')
        a('v_mov_b32 v6, 1\ns_branch L_a_ok')
        if numa:
            a('; ---- A: which of the two result copies is homed next to this XCD (speed only)')
            a('L_a_cal:')
            a(f's_lshr_b32 s56, s2, 6\ns_lshl_b32 s56, s56, 14\ns_and_b32 s57, s2, 63\ns_lshl_b32 s57, s57, 7\ns_add_u32 s56, s56, s57\ns_add_u32 s56, s56, {CAL}\ns_add_u32 s57, s56, 8192')
            a('v_mov_b32 v3, 0\ns_mov_b64 exec, 1\ns_setprio 0')
            spin_lds(O_PROG, END - 4, 5, sleep=8)
            spin_lds(O_R0, 4, 5, sleep=0)
            a('buffer_store_dword v3, v3, s[44:47], s56 offen sc1\nbuffer_store_dword v3, v3, s[44:47], s57 offen sc1')
            a('s_waitcnt vmcnt(1)\ns_memtime s[94:95]\ns_waitcnt vmcnt(0)\ns_memtime s[96:97]\ns_waitcnt lgkmcnt(0)')
            a(f's_sub_u32 s96, s96, s94\ns_cmp_gt_u32 s96, {thr}\ns_cselect_b32 s60, 1, 2\nv_mov_b32 v3, s60\nds_write_b32 v14, v3 offset:{O_R1}\ns_waitcnt lgkmcnt(0)')
            finish()

    def sec_b():
        a('L_b_gate:')
        a(f's_lshl_b32 s56, s7, 12\ns_and_b32 s57, s53, 1\ns_lshl_b32 s57, s57, 7\ns_add_u32 s56, s56, s57\ns_add_u32 s56, s56, {HB}')
        a('v_lshrrev_b32 v13, 3, v0\nv_lshlrev_b32 v13, 8, v13\nv_and_b32 v7, 7, v0\nv_lshl_add_u32 v13, v7, 4, v13')
        a('v_bfe_u32 v108, v0, 3, 1')
        a('v_and_b32 v110, 1, v1\nv_lshlrev_b32 v110, 7, v110\nv_lshl_add_u32 v110, v108, 5, v110\nv_and_b32 v109, 3, v0\nv_lshl_add_u32 v110, v109, 3, v110')
        a(f'v_lshrrev_b32 v109, 1, v1\nv_lshl_add_u32 v110, v109, 6, v110\nv_bfe_u32 v109, v0, 2, 1\nv_lshl_add_u32 v110, v109, 2, v110\nv_add_u32 v110, {L_HA}, v110')
        a('v_mov_b32 v4, 0\nv_mov_b32 v5, 0')
        a('s_waitcnt vmcnt(0)')
        for k in range(4): a(f'v_dot2c_f32_bf16 v4, v{116+k}, v{124+k}')
        for k in range(4): a(f'v_dot2c_f32_bf16 v5, v{120+k}, v{124+k}')
        a('v_permlane32_swap_b32 v4, v5\nv_add_f32 v4, v4, v5')
        a('v_mov_b32 v5, v4\nv_permlane16_swap_b32 v4, v5\nv_add_f32 v4, v4, v5')
        for s in (8, 4, 2, 1): a(f'v_add_f32_dpp v4, v4, v4 row_ror:{s} row_mask:0xf bank_mask:0xf')
        a('v_cvt_pk_bf16_f32 v4, v4, v4\nv_and_b32 v4, 0xffff0000, v4')
        a('v_mul_f32 v4, 0xbfb8aa3b, v4\nv_exp_f32 v4, v4\nv_add_f32 v4, 1.0, v4\nv_rcp_f32 v4, v4')
        a('v_cvt_pk_bf16_f32 v4, v4, v4\nv_and_b32 v4, 0xffff0000, v4')
        a('v_sub_f32 v5, 1.0, v4\nv_cvt_pk_bf16_f32 v5, v5, v5\nv_and_b32 v5, 0xffff0000, v5')
        a('v_lshrrev_b32 v6, 5, v0\nv_lshl_add_u32 v6, v6, 2, v14')
        a(f'ds_write2_b32 v6, v4, v5 offset0:{O_G//4} offset1:{O_G//4+2}')
        a(f'ds_write_b32 v14, v15 offset:{O_FG}')
        a(f'v_lshl_add_u32 v6, v108, 2, v14\nds_read_b32 v109, v6 offset:{O_G+8}')
        a('s_waitcnt lgkmcnt(0)')
        a('s_cmp_lt_u32 s5, s34\ns_cbranch_scc1 L_ab_gemv')
        count(O_GD)
        finish()
        a('L_b_slow:')
        slow_path(32, 2, 'L_b_poll')
        a('s_branch L_b_ok')
        a('L_b_h:')
        if bdel: spin_lds(O_PROG, G0['gu'] + 4 + bdel, 5, sleep=1, cached=True)
        a('L_b_poll:')
        guard()
        a('buffer_load_dwordx4 v[32:35], v13, s[44:47], s56 offen sc1\nbuffer_load_dwordx4 v[36:39], v13, s[44:47], s56 offen offset:2048 sc1')
        a('s_waitcnt vmcnt(0)')
        clean_check(32, 2, 4)
        branch_if_bad(4, 'L_b_slow')
        a('L_b_ok:')
        stamp(4)
        for r in (32, 36): a(f'v_permlane32_swap_b32 v{r}, v{r+1}\nv_permlane32_swap_b32 v{r+2}, v{r+3}')
        for r in (32, 36): a(f'v_add_f32 v{r}, v{r}, v{r+1}\nv_add_f32 v{r+2}, v{r+2}, v{r+3}')
        a('v_permlane16_swap_b32 v32, v34\nv_permlane16_swap_b32 v36, v38')
        a('v_add_f32 v32, v32, v34\nv_add_f32 v36, v36, v38')
        a('v_cvt_pk_bf16_f32 v32, v32, v36\nv_and_b32 v36, 0xffff0000, v32\nv_lshlrev_b32 v32, 16, v32')
        a('v_mul_f32 v33, 0xbfb8aa3b, v32\nv_exp_f32 v33, v33\nv_mul_f32 v36, v36, v109\nv_add_f32 v33, 1.0, v33\nv_rcp_f32 v33, v33\nv_mul_f32 v32, v32, v33')
        a('v_cvt_pk_bf16_f32 v32, v32, v32\nv_and_b32 v32, 0xffff0000, v32\nv_mul_f32 v32, v32, v36')
        a('v_cvt_pk_bf16_f32 v32, v32, v32\nds_write_b32 v110, v32')
        a(f'ds_write_b32 v14, v15 offset:{O_FB}')
        a('s_waitcnt lgkmcnt(0)')
        stamp(5)
        finish()

    def sec_att():
        a('L_att:')
        a('s_sub_u32 s3, s3, 3\ns_setprio 1\ns_lshl_b32 s55, s3, 13')
        a('v_xor_b32 v4, v1, v2\nv_lshlrev_b32 v3, 8, v2\nv_lshl_add_u32 v3, v4, 4, v3\nv_add_u32 v3, s55, v3')
        a('v_xor_b32 v4, 64, v3\nv_xor_b32 v5, 0x80, v3\nv_xor_b32 v6, 0xc0, v3')
        a(f'v_and_b32 v12, 3, v2\nv_mul_u32_u24 v13, {QS}, v12\nv_lshl_add_u32 v13, v1, 4, v13\nv_add_u32 v13, {L_Q}, v13')
        a(f's_lshl_b32 s56, s3, 6\ns_add_u32 s56, s56, {L_P}\nv_mul_u32_u24 v7, {PS}, v12\nv_lshl_add_u32 v7, v1, 3, v7\nv_add_u32 v7, s56, v7')
        a('v_lshl_add_u32 v12, v12, 2, v14')
        a(f'v_lshrrev_b32 v9, 2, v2\nv_mul_u32_u24 v8, {PS}, v9\nv_lshl_add_u32 v8, v1, 4, v8\nv_add_u32 v8, {L_P}, v8')
        a('v_lshl_add_u32 v10, v1, 3, v9\nv_lshlrev_b32 v10, 8, v10\nv_and_b32 v11, 1, v1\nv_lshl_add_u32 v9, v11, 2, v9\nv_xor_b32 v9, s3, v9\nv_lshl_add_u32 v10, v9, 5, v10')
        a(f'v_and_b32 v9, 3, v2\nv_lshl_add_u32 v10, v9, 3, v10\nv_add_u32 v10, {L_V}, v10')
        a('v_lshlrev_b32 v11, 14, v1\nv_lshl_add_u32 v11, v9, 2, v11\nv_lshrrev_b32 v72, 2, v2\nv_lshl_add_u32 v11, v72, 8, v11')
        a('s_and_b32 s57, s5, 7\ns_lshl_b32 s57, s57, 4\ns_bfe_u32 s60, s5, 0x10003\ns_lshl_b32 s60, s60, 10\ns_add_u32 s57, s57, s60\ns_lshr_b32 s60, s5, 4\ns_lshl_b32 s60, s60, 7\ns_add_u32 s57, s57, s60')
        a(f's_lshl_b32 s60, s4, 16\ns_add_u32 s57, s57, s60\ns_lshl_b32 s60, s3, 11\ns_add_u32 s57, s57, s60\ns_add_u32 s57, s57, {OB}')
        a(f's_lshl_b32 s56, s4, 5\ns_add_u32 s56, s56, s5\ns_lshl_b32 s56, s56, 6\ns_add_u32 s56, s56, {ST}')
        a('s_mov_b32 s58, 0x3db504f3\ns_mov_b32 s59, 0x3fb8aa3b')
        a('v_lshlrev_b32 v9, 3, v9\nv_mov_b32 v80, 0xfffff000\nv_lshlrev_b32 v81, 4, v1\nv_lshl_add_u32 v82, v1, 2, v14')
        a('v_mov_b32 v84, 0x3f803f80\nv_mov_b32 v85, v84\nv_mov_b32 v86, v84\nv_mov_b32 v87, v84')
        a(f's_lshl_b32 s61, s3, 1\ns_add_u32 s61, s61, {G0["k"]+2}')
        stamp(1)
        spin_lds(O_PROG, 's61', 72, sleep=2)
        stamp(2)
        for t in range(2):
            for ks in range(4):
                r = 16 + (t * 4 + ks) * 4
                a(f'ds_read_b128 v[{r}:{r+3}], v{3+ks} offset:{t*4096}')
        count(O_KD)
        spin_lds(O_FT, 1, 75, sleep=1, extra=f'ds_read_b32 v73, v14 offset:{O_TAG}')
        stamp(3)
        for ks in range(4): a(f'ds_read_b128 v[{48+4*ks}:{51+4*ks}], v13 offset:{ks*64}')
        a('v_readfirstlane_b32 s6, v75\nv_readfirstlane_b32 s52, v73\nv_alignbit_b32 v9, v73, v73, v9\nv_and_b32 v9, 0xfff, v9')
        tagwords()
        if stamps: a('s_waitcnt lgkmcnt(0)')
        for ks in range(4):
            if not stamps: a(f's_waitcnt lgkmcnt({3-ks})')
            for t in range(2):
                d = 64 + t * 4; kf = 16 + (t * 4 + ks) * 4
                cacc = '0' if ks == 0 else f'v[{d}:{d+3}]'
                a(f'v_mfma_f32_16x16x32_bf16 v[{d}:{d+3}], v[{kf}:{kf+3}], v[{48+4*ks}:{51+4*ks}], {cacc}')
        for t in range(2):
            d = 64 + t * 4
            a(f'v_cvt_pk_bf16_f32 v72, v{d}, v{d+1}\nv_cvt_pk_bf16_f32 v73, v{d+2}, v{d+3}')
            a(f'v_lshlrev_b32 v{d}, 16, v72\nv_and_b32 v{d+1}, 0xffff0000, v72\nv_lshlrev_b32 v{d+2}, 16, v73\nv_and_b32 v{d+3}, 0xffff0000, v73')
            for r in range(4): a(f'v_mul_f32 v{d+r}, s58, v{d+r}')
            a(f'v_cvt_pk_bf16_f32 v72, v{d}, v{d+1}\nv_cvt_pk_bf16_f32 v73, v{d+2}, v{d+3}')
            a(f'v_lshlrev_b32 v{d}, 16, v72\nv_and_b32 v{d+1}, 0xffff0000, v72\nv_lshlrev_b32 v{d+2}, 16, v73\nv_and_b32 v{d+3}, 0xffff0000, v73')
        a('v_max3_f32 v74, v64, v65, v66\nv_max3_f32 v74, v74, v67, v68\nv_max3_f32 v74, v74, v69, v70\nv_max_f32 v74, v74, v71')
        a('s_mov_b32 exec_lo, 0x000f000f\ns_mov_b32 exec_hi, 0x000f000f')
        a(f'ds_max_f32 v12, v74 offset:{O_MX}')
        count(O_CMAX)
        spin_lds(O_CMAX, 8, 72, sleep=0, extra=f'ds_read_b32 v74, v12 offset:{O_MX}')
        a('v_mul_f32 v74, 0xbfb8aa3b, v74')
        for r in range(8): a(f'v_fma_f32 v{64+r}, v{64+r}, s59, v74')
        for r in range(8): a(f'v_exp_f32 v{64+r}, v{64+r}')
        a('v_cvt_pk_bf16_f32 v76, v64, v65\nv_cvt_pk_bf16_f32 v77, v66, v67\nv_cvt_pk_bf16_f32 v78, v68, v69\nv_cvt_pk_bf16_f32 v79, v70, v71')
        a('s_mov_b32 exec_lo, 0x000f000f\ns_mov_b32 exec_hi, 0x000f000f')
        a('ds_write2_b64 v7, v[76:77], v[78:79] offset0:0 offset1:4')
        count(O_CL)
        spin_lds(O_CL, 8, 72, sleep=0)
        stamp(4)
        for ks in range(8): a(f'ds_read_b128 v[{16+4*ks}:{19+4*ks}], v8 offset:{ks*64}')
        a(f'ds_read_b32 v72, v14 offset:{O_PROG}\nds_read_b32 v73, v82 offset:{O_MX}')
        a('s_waitcnt lgkmcnt(0)')
        a('s_cmp_eq_u32 s3, 0\ns_cbranch_scc0 L_att_pv')
        for ks in range(8):
            cacc = '0' if ks == 0 else 'v[68:71]'
            a(f'v_mfma_f32_16x16x32_bf16 v[68:71], v[{16+4*ks}:{19+4*ks}], v[84:87], {cacc}')
        a('v_and_or_b32 v76, v73, v80, s48\nv_mov_b32 v78, s50\nv_mov_b32 v79, s51\nv_and_or_b32 v77, v68, v80, s49')
        a('s_mov_b32 exec_lo, 0x00010001\ns_mov_b32 exec_hi, 0x00010001')
        a('s_cmp_eq_u32 s6, 2\ns_cbranch_scc1 L_att_sl')
        a('buffer_store_dwordx4 v[76:79], v81, s[44:47], s56 offen sc1\ns_branch L_att_sd')
        a('L_att_sl:')
        a('buffer_store_dwordx4 v[76:79], v81, s[44:47], s56 offen')
        a('L_att_sd:')
        a('s_mov_b64 exec, -1')
        a('L_att_pv:')
        def pvmm(ks):
            r = 88 + 4 * ks
            cacc = '0' if ks == 0 else 'v[64:67]'
            a(f'v_mfma_f32_16x16x32_bf16 v[64:67], v[{16+4*ks}:{19+4*ks}], v[{r}:{r+3}], {cacc}')
        ks0 = 0; pend = []
        for ks1 in vph:
            spin_lds(O_PROG, G0['v'] + 2 * ks1, 72, sleep=0, cached=True)
            for ks in range(ks0, ks1):
                r = 88 + 4 * ks
                a(f'ds_read_b64_tr_b16 v[{r}:{r+1}], v10 offset:{ks*8192}\nds_read_b64_tr_b16 v[{r+2}:{r+3}], v10 offset:{ks*8192+1024}')
            new = list(range(ks0, ks1))
            todo = pend if pvpipe else new
            for ks in todo:
                a(f's_waitcnt lgkmcnt({2*(ks1-1-ks)})')
                pvmm(ks)
            pend = new if pvpipe else []
            ks0 = ks1
        for ks in pend:
            a(f's_waitcnt lgkmcnt({2*(7-ks)})')
            pvmm(ks)
        count(O_CO)
        a('s_cmp_eq_u32 s6, 2')
        a('v_and_or_b32 v64, v64, v80, v9')
        a('s_cbranch_scc0 L_att_g')
        a('buffer_store_dword v64, v11, s[44:47], s57 offen')
        stamp(5)
        finish()
        a('L_att_g:')
        a('buffer_store_dword v64, v11, s[44:47], s57 offen sc1')
        stamp(5)
        finish()

    def sec_c():
        sh = 14 if numa else 13
        def woread(n):
            a(f'ds_read_b128 v[{16+4*n}:{19+4*n}], v98 offset:{L_WO+n*4096}')
        def oloads():
            for u in range(2):
                a(f'buffer_load_dwordx4 v[{64+4*u}:{67+4*u}], v4, s[44:47], s62 offen offset:{u*1024} sc1')
        def sload():
            a('buffer_load_dwordx4 v[72:75], v6, s[44:47], s61 offen sc1')
        a('L_c_main:')
        a('s_sub_u32 s3, s3, 11')
        a('s_mov_b64 s[64:65], s[28:29]\ns_mov_b32 s66, 2048')
        a('s_lshl_b32 s55, s53, 2\ns_add_u32 s55, s55, s3')
        a(f's_lshl_b32 s61, s4, 11\ns_add_u32 s61, s61, {ST}')
        a(f's_lshl_b32 s62, s4, 16\ns_lshl_b32 s60, s55, 11\ns_add_u32 s62, s62, s60\ns_add_u32 s62, s62, {OB}')
        if warm:
            a('; bring the mailbox lines into L2 early')
            a('v_lshlrev_b32 v3, 7, v0\ns_sub_u32 s60, s61, 2048\nv_mov_b32 v4, s62\nv_mov_b32 v5, s60\nv_cmp_gt_u32 vcc, 16, v0\nv_cndmask_b32 v4, v5, v4, vcc\nv_add_u32 v3, v3, v4')
            a('s_mov_b32 exec_hi, 0\nbuffer_load_dword v122, v3, s[44:47], 0 offen sc1\ns_mov_b64 exec, -1')
        a('s_lshr_b32 s60, s53, 1\ns_lshl_b32 s60, s60, 4\ns_add_u32 s61, s61, s60')
        a('v_and_b32 v12, 1, v0\nv_lshlrev_b32 v12, 4, v12\nv_mov_b32 v13, 0xffff\nv_lshlrev_b32 v12, v12, v13\nv_bfe_u32 v13, v0, 1, 2')
        for k in range(4): a(f'v_cmp_eq_u32 vcc, {k}, v13\nv_cndmask_b32 v{8+k}, 0, v12, vcc')
        a('v_lshrrev_b32 v4, 3, v0\nv_and_b32 v5, 7, v0\nv_bfe_u32 v12, v0, 3, 1\nv_and_b32 v13, 1, v1\nv_lshlrev_b32 v6, 6, v5\nv_lshl_add_u32 v6, v13, 9, v6\nv_lshl_add_u32 v6, v12, 10, v6')
        a(f'v_lshlrev_b32 v126, {sh}, v4\nv_lshl_add_u32 v126, v5, 4, v126')
        a(f's_lshl_b32 s60, s3, 6\ns_add_u32 s60, s60, {L_HA}\nv_lshlrev_b32 v3, 5, v12\nv_lshl_add_u32 v3, v1, 3, v3\nv_add_u32 v3, s60, v3')
        a('v_lshl_add_u32 v72, v12, 2, v14')
        a('v_mov_b32 v124, 0xfffff000\nv_lshlrev_b32 v4, 4, v0\nv_lshlrev_b32 v125, 7, v0')
        a(f's_lshl_b32 s63, s3, 10\nv_add_u32 v98, s63, v4\nv_add_u32 v13, {L_CR}, v98\nv_xor_b32 v7, 0x400, v13\nv_xor_b32 v12, 0x800, v13\nv_xor_b32 v99, 0xc00, v13')
        a('v_and_b32 v2, 1, v1\nv_lshlrev_b32 v2, 2, v2\nv_and_b32 v1, 2, v1\nv_add_u32 v2, v2, v1')
        a(f's_lshl_b32 s59, s4, 3\ns_add_u32 s59, s59, s53\ns_lshl_b32 s58, s54, {sh+3}\ns_add_u32 s58, s58, {PB}')
        a('s_lshl_b32 s57, s59, 7\ns_add_u32 s57, s57, s58')
        a(f's_lshl_b32 s60, s4, {sh}\ns_add_u32 s58, s58, s60\ns_lshl_b32 s60, s53, 4\ns_add_u32 s58, s58, s60')
        a('s_lshr_b32 s60, s59, 5\ns_lshl_b32 s60, s60, 10\ns_lshl_b32 s63, s54, 8\ns_add_u32 s60, s60, s63\ns_and_b32 s63, s59, 15\ns_lshl_b32 s63, s63, 4\ns_add_u32 s60, s60, s63\ns_bfe_u32 s63, s59, 0x10004\ns_lshl_b32 s63, s63, 3\ns_add_u32 s60, s60, s63')
        if numa: a('s_add_u32 s56, s57, 8192\ns_add_u32 s55, s58, 8192')
        spin_lds(O_FG, 1, 127, sleep=8, extra=f'ds_read_b32 v123, v72 offset:{O_G}')
        a('v_mov_b32 v112, 0\nv_mov_b32 v113, 0')
        a('s_cmp_ge_u32 s5, s34\ns_cbranch_scc1 L_c_noh')
        spin_lds(O_FB, 1, 127, sleep=4, extra='ds_read_b64 v[112:113], v3')
        a('L_c_noh:')
        for n in range(2):
            for k in range(4): a(f'v_and_b32 v{40+4*n+k}, v{112+n}, v{8+k}')
        spin_lds(O_CL, 8, 127, sleep=4, extra=f'ds_read_b32 v97, v14 offset:{O_TAG}')
        a('v_readfirstlane_b32 s52, v97')
        tagwords()
        a('s_setprio 3')
        stamp(1)
        spin_lds(O_CO, 8, 127, sleep=cosleep, extra=f'ds_read_b32 v114, v14 offset:{O_PROG}')
        spin_lds(O_PROG, END - lead, 114, sleep=0, cached=True)
        stamp(3)
        oloads(); sload()
        if stamps: a('s_waitcnt lgkmcnt(0)')
        for n in range(2): a(f'ds_read_b128 v[{32+4*n}:{35+4*n}], v98 offset:{L_WD+n*4096}')
        nearly = 4 - lead
        for n in range(nearly): woread(n)
        for n in range(2):
            a(f's_waitcnt lgkmcnt({nearly+1-n})')
            cacc = '0' if n == 0 else 'v[100:103]'
            a(f'v_mfma_f32_16x16x32_bf16 v[100:103], v[{40+4*n}:{43+4*n}], v[{32+4*n}:{35+4*n}], {cacc}')
        def xcheck(pend):
            for u in range(2):
                a(f's_waitcnt vmcnt({pend+1-u})')
                clean_check(64 + 4 * u, 1, 5, first=(u == 0))
            a('v_and_b32 v5, 0xfff, v5\nv_cmp_ne_u32 vcc, 0, v5')
        xcheck(1)
        a('s_waitcnt vmcnt(0)\ns_mov_b64 s[70:71], vcc\ns_cbranch_vccz L_c_schk')
        a('s_mov_b64 exec, vcc')
        oloads()
        a('s_mov_b64 exec, -1\ns_branch L_c_schk')
        a('L_c_late:')
        spin_lds(O_PROG, END, 127, sleep=0)
        for n in range(nearly, 4): woread(n)
        a('s_waitcnt lgkmcnt(0)\ns_branch L_c_mm')
        a('L_c_stat:')
        guard()
        a('s_sleep 2')
        sload()
        a('s_waitcnt vmcnt(0)')
        a('L_c_schk:')
        clean_check(72, 1, 76)
        a(f'v_max_f32_dpp v96, v72, v72 {DP[0]}')
        branch_if_bad(76, 'L_c_stat', '0xfff')
        a(f'v_max_f32_dpp v96, v96, v96 {DP[1]}')
        a(f'ds_read_b32 v127, v14 offset:{O_PROG}')
        late = list(range(nearly, 4))
        def fill():
            if late: woread(late.pop(0))
        fill()
        a(f'v_max_f32_dpp v96, v96, v96 {DP[2]}')
        a('v_mov_b32 v97, v96')
        fill(); fill()
        a('v_permlane16_swap_b32 v96, v97\nv_max_f32 v96, v96, v97')
        a('v_sub_f32 v96, v72, v96\nv_mul_f32 v96, 0x3fb8aa3b, v96\nv_exp_f32 v96, v96')
        fill()
        a('v_mul_f32 v112, v96, v73\nv_mul_f32 v96, v96, v123\nv_mov_b32 v97, v96')
        a(f'v_add_f32_dpp v112, v112, v112 {DP[0]}')
        a('s_cmp_eq_u64 s[70:71], 0')
        a('v_permlane16_swap_b32 v96, v97')
        a(f'v_add_f32_dpp v112, v112, v112 {DP[1]}')
        stamp(2)
        a('s_cbranch_scc1 L_c_ook')
        a('s_mov_b64 exec, s[70:71]\ns_branch L_c_oloop')
        a('L_c_oy:')
        a('s_mov_b64 exec, vcc')
        guard()
        oloads()
        a('L_c_oloop:')
        xcheck(0)
        a('s_cbranch_vccnz L_c_oy')
        a('s_mov_b64 exec, -1')
        a('L_c_ook:')
        stamp(4)
        for e in range(2): a(f'v_mul_f32 v{104+e}, v96, v{64+e}')
        a(f'v_add_f32_dpp v112, v112, v112 {DP[2]}')
        for e in range(2, 4): a(f'v_mul_f32 v{104+e}, v96, v{64+e}')
        a('v_mov_b32 v113, v112')
        for e in range(4): a(f'v_fmac_f32 v{104+e}, v97, v{68+e}')
        a('v_permlane16_swap_b32 v112, v113')
        for k, d in enumerate(DP):
            for e in range(4): a(f'v_add_f32_dpp v{104+e}, v{104+e}, v{104+e} {d}')
            if k == 0: a('v_add_f32 v112, v112, v113')
            if k == 1: a('v_rcp_f32 v112, v112')
        for e in range(4): a(f'v_mul_f32 v{104+e}, v{104+e}, v112')
        if numa: count(O_R0)
        for e in range(4): a(f'v_cvt_pk_bf16_f32 v{104+e}, v{104+e}, v{104+e}')
        def ands(n):
            d = 116 + 4 * (n & 1)
            for k in range(4): a(f'v_and_b32 v{d+k}, v{104+n}, v{8+k}')
        ands(0)
        a(f's_waitcnt lgkmcnt({1 if numa and not stamps else 0})')
        a(f'v_cmp_gt_i32 vcc, {END}, v127\ns_cbranch_vccnz L_c_late')
        a('L_c_mm:')
        for n in range(4):
            if n < 3: ands(n + 1)
            d = 116 + 4 * (n & 1)
            a(f'v_mfma_f32_16x16x32_bf16 v[100:103], v[{d}:{d+3}], v[{16+4*n}:{19+4*n}], v[100:103]')
        a('ds_write_b128 v13, v[100:103]')
        count(O_CC, rtn=127)
        a('ds_read_b128 v[104:107], v7\nds_read_b128 v[108:111], v12\nds_read_b128 v[112:115], v99')
        a('s_waitcnt lgkmcnt(2)')
        a('v_readfirstlane_b32 s63, v127')
        a('v_pk_add_f32 v[104:105], v[104:105], v[100:101]\nv_pk_add_f32 v[106:107], v[106:107], v[102:103]')
        a('s_cmp_eq_u32 s63, 3\ns_cbranch_scc0 L_c_end')
        a('s_waitcnt lgkmcnt(0)')
        a('v_pk_add_f32 v[108:109], v[108:109], v[112:113]\nv_pk_add_f32 v[110:111], v[110:111], v[114:115]')
        a('v_pk_add_f32 v[104:105], v[104:105], v[108:109]\nv_pk_add_f32 v[106:107], v[106:107], v[110:111]')
        for k in range(4): a(f'v_and_or_b32 v{104+k}, v{104+k}, v124, s{48+k}')
        a('buffer_store_dwordx4 v[104:107], v126, s[44:47], s57 offen sc1')
        if numa:
            a('buffer_store_dwordx4 v[104:107], v126, s[44:47], s56 offen sc1')
            spin_lds(O_R1, 1, 108, sleep=1)
            a('v_cmp_eq_u32 vcc, 1, v108\ns_cmp_lg_u64 vcc, 0\ns_cselect_b32 s58, s58, s55')
        stamp(5)
        a('s_waitcnt vmcnt(0)\ns_branch L_c_fp1')
        a('L_c_fpoll:')
        a('s_mov_b64 exec, vcc')
        guard()
        a('L_c_fp1:')
        a('buffer_load_dwordx4 v[64:67], v125, s[44:47], s58 offen sc1')
        a('s_waitcnt vmcnt(0)')
        clean_check(64, 1, 5)
        branch_if_bad(5, 'L_c_fpoll', '0xfff')
        a('s_mov_b64 exec, -1')
        stamp(6)
        a('v_permlane32_swap_b32 v64, v65\nv_permlane32_swap_b32 v66, v67\nv_add_f32 v64, v64, v65\nv_add_f32 v66, v66, v67')
        a('v_permlane16_swap_b32 v64, v66\nv_add_f32 v64, v64, v66')
        for s in (8, 4, 2, 1): a(f'v_add_f32_dpp v64, v64, v64 row_ror:{s} row_mask:0xf bank_mask:0xf')
        a('v_cvt_pk_bf16_f32 v64, v64, v64')
        a('s_mov_b32 exec_lo, 0x00010001\ns_mov_b32 exec_hi, 0x00010001')
        a('buffer_store_short v64, v2, s[64:67], s60 offen')
        a('s_cmp_eq_u32 s2, 0\ns_cbranch_scc0 L_c_end')
        a('; every workgroup has used the tag by now: it becomes the next launch\'s epoch')
        a('s_mov_b64 exec, 1\nv_mov_b32 v4, s52\nv_mov_b32 v5, 0\nbuffer_store_dword v4, v5, s[44:47], 0 offen')
        a('L_c_end:')
        stamp(7)

    def sec_fin():
        a('L_fin:')
        a('s_mov_b64 exec, -1\ns_waitcnt lgkmcnt(0) vmcnt(0)')
        a('s_memrealtime s[90:91]\ns_getreg_b32 s92, hwreg(HW_REG_XCC_ID)\ns_waitcnt lgkmcnt(0)')
        if not ampall:
            for k in range(11): a(f'v_writelane_b32 v4, s{72+2*k}, {k}')
            a('v_writelane_b32 v4, s68, 11\ns_getreg_b32 s93, hwreg(HW_REG_HW_ID)\nv_writelane_b32 v4, s93, 12')
            a(f's_mul_i32 s60, s2, {NW}\ns_add_u32 s60, s60, s69\ns_lshl_b32 s60, s60, 6\ns_add_u32 s60, s60, {STAMP}')
            a('v_lshlrev_b32 v3, 2, v0\nv_add_u32 v3, s60, v3\ns_mov_b64 exec, 0xffff\nglobal_store_dword v3, v4, s[32:33]')
        else:
            a(f's_cmp_eq_u32 s69, 0\ns_cbranch_scc0 L_am1\ns_lshl_b32 s60, s2, 2\ns_add_u32 s60, s60, {STAMP}\nv_mov_b32 v3, s60\nv_mov_b32 v5, s72\ns_mov_b64 exec, 1\nglobal_store_dword v3, v5, s[32:33] sc1\ns_endpgm')
            a('L_am1:')
            a('s_cmp_eq_u32 s2, 0\ns_cbranch_scc0 L_abort\ns_cmp_ge_u32 s69, 11\ns_cbranch_scc0 L_abort')
            a(f's_sleep 100\nv_lshlrev_b32 v3, 4, v0\nv_add_u32 v3, {STAMP}, v3\nglobal_load_dwordx4 v[8:11], v3, s[32:33] sc1\ns_waitcnt vmcnt(0)')
            a('v_subrev_u32 v8, s72, v8\nv_subrev_u32 v9, s72, v9\nv_subrev_u32 v10, s72, v10\nv_subrev_u32 v11, s72, v11\nv_min3_i32 v8, v8, v9, v10\nv_min_i32 v8, v8, v11\nv_max_i32 v8, 0xfffffe00, v8')
            a('s_mov_b32 s61, 0\ns_mov_b32 s62, 0\nL_am2:\ns_nop 4\nv_readlane_b32 s63, v8, s62\ns_nop 4\ns_min_i32 s61, s61, s63\ns_add_u32 s62, s62, 1\ns_cmp_lt_u32 s62, 64\ns_cbranch_scc1 L_am2')
            if ampsel == 'xcc': a('s_and_b32 s60, s92, 7\ns_mul_i32 s60, s60, 100\ns_add_u32 s90, s72, s60\ns_add_u32 s90, s90, s61')
            elif ampsel is not None:
                a(f'v_mov_b32 v3, {STAMP+4*ampsel}\nglobal_load_dword v9, v3, s[32:33] sc1\ns_waitcnt vmcnt(0)\nv_readfirstlane_b32 s60, v9\ns_nop 4\ns_sub_u32 s60, s60, s72\ns_sub_u32 s60, s60, s61\ns_mul_i32 s60, s60, 10\ns_add_u32 s90, s72, s60\ns_add_u32 s90, s90, s61')
            a('s_sub_u32 s60, s90, s72\ns_sub_u32 s60, s60, s61\ns_mul_i32 s60, s60, 10\ns_min_u32 s60, s60, 100000\ns_add_u32 s60, s60, 2000\ns_add_u32 s60, s60, s61')
            a('L_am3:\ns_memrealtime s[62:63]\ns_waitcnt lgkmcnt(0)\ns_sub_u32 s62, s62, s72\ns_cmp_lt_u32 s62, s60\ns_cbranch_scc1 L_am3')

    a.raw(HDR.rstrip('\n'))
    a.raw(f'; @launch grid=(256,1,1) block=({NW*64},1,1) lds={LDS_BYTES}')
    a.raw(DOC)
    a.raw('.amdgcn_target "amdgcn-amd-amdhsa--gfx950"')
    a.raw('.text\n.p2align 12')
    a('L_first:')
    sec_att(); sec_b(); sec_a_extra()
    a.raw('.fill (0xd00 - (. - L_first)) / 4, 4, 0xbf810000')
    a.raw(f'.globl {KN}\n.p2align 8\n.type {KN},@function\n{KN}:')
    a.flush_hist()
    if split:
        sec_entry()
        a('L_loader:')
        a(f's_getreg_b32 s60, hwreg(HW_REG_XCC_ID, 0, 3)\ns_bitcmp1_b32 {split[0]}, s60\ns_cbranch_scc1 L_loader2')
        Ws = 36
        W, Wv = split[1], split[2]
        sec_loader('L_loader1')
        sec_ab()
        a.raw('.p2align 12')
        W, Wv = split[3], split[4]
        sec_loader('L_loader2')
    else:
        sec_entry(); sec_loader(); sec_ab()
    a.raw('.p2align 12')
    sec_c()
    if fin: sec_fin()
    a('L_abort:')
    a('s_endpgm')
    a.raw('.section .rodata,"a"\n.p2align 6')
    a.raw(f'.amdhsa_kernel {KN}')
    a.raw('  .amdhsa_next_free_vgpr 128\n  .amdhsa_next_free_sgpr 102\n  .amdhsa_accum_offset 128\n  .amdhsa_group_segment_fixed_size 0\n  .amdhsa_kernarg_size 104')
    a.raw('  .amdhsa_user_sgpr_count 2\n  .amdhsa_user_sgpr_kernarg_segment_ptr 1\n  .amdhsa_system_sgpr_workgroup_id_x 1\n.end_amdhsa_kernel')
    txt = a.text()
    if fin:
        z = ''.join(f'    s_mov_b32 s{74+2*k}, 0\n' for k in range(8)) if stamps else ''
        txt = txt.replace('    v_readfirstlane_b32 s3, v1\n', '    v_readfirstlane_b32 s3, v1\n    s_nop 1\n    s_mov_b32 s69, s3\n' + z, 1)
    return txt

if __name__ == '__main__':
    kw = eval('dict(%s)' % (sys.argv[2] if len(sys.argv) > 2 else ''))
    open(sys.argv[1], 'w').write(gen(**kw))
```

```python
import sys, os
sys.path.insert(0, 'tools')
from asmlib import Asm

KN = 'gated_mix__sliding_block_cached__swiglu_ffn__decode_kernel'
REF = 'gated_mix__sliding_block_cached__swiglu_ffn__decode.s.ref'
HDR = open(REF).read().split('; Override launch')[0] if os.path.exists(REF) else ''

QB, HB, ST, OB, PB, CAL = 0x10000, 0x30000, 0x50000, 0x60000, 0x100000, 0x180000
WS_SPAN = 0x200000
STAMP = 0x8000000
L_V = 65536
L_GU = L_V + 49152
L_WD, L_WO = 16384, 24576
L_Q = 131072
QS, PS = 320, 576
L_P = L_Q + 1280
L_MISC = L_P + 2304
O_MX = 0
O_PROG, O_CMAX, O_CL, O_KD, O_CO, O_FB, O_FG, O_CC = [32 + 4 * k for k in range(8)]
O_FT, O_TAG, O_G = 64, 68, 72
O_GD, O_R0, O_R1 = 96, 104, 108
L_HA = L_MISC + 256
L_CR = L_Q + 4096
assert L_HA + 256 <= L_CR
L_WQ = L_CR + 4096
LDS_BYTES = L_WQ + 16384
NW = 15
ROLES = [('A', [1]), ('B', [2]), ('L', [0]), ('att', list(range(3, 11))), ('C', [11, 12, 13, 14])]

DOC = '''; ---------------------------------------------------------------------------------------------
; One launch, 256 workgroups (one per CU), 15 waves each.  wg = 8*i + G, G = kv head.
;   wave 0      loader : streams wq tile, gate/up tile, K chunk, V chunk, w_down tile, wo tile into LDS
;   wave 1 (A)  x@wq tile -> partial q to the group, gathers q for (batch, 4 heads)
;   waves 11-14 merge the 16 chunk partials per batch (max/sum rescale), times wo rows (+ FFN rows),
; epoch word at d_ws[0]; stores stay in the XCD L2 only when the whole group reported the same XCD.
; ---------------------------------------------------------------------------------------------'''

def gen(ampall=False, light=False, stamps=False, limit=1 << 22, pol='nt', W=36, Ws=None, Wv=None, We=28, rot=1,
        vph=(6, 8), force_global=False, ktry=6, agap=4, order=('wq', 'gu', 'k', 'v', 'wd', 'wo'), lead=3, thr=64,
        pvpipe=False, cosleep=0, numa=True, warm=True, wpol=None, adel=0, bdel=3, split=None, nblk=(3, 4, 3, 4, 3, 4, 3, 4), ampsel=None, calearly=True, oracle=None, ofirst=0, h2wait=0, wqx=4):
    a = Asm()
    fin = stamps or light
    if light: stamps = False
    wpol = pol if wpol is None else wpol
    NG = dict(wq=4, k=16, v=16, gu=4, wd=2, wo=4)
    G0 = {}; n = 0
    for ph in order: G0[ph] = n; n += NG[ph]
    END = n
    assert order.index('gu') < order.index('v') and 1 <= lead <= 4
    DP = [d + ' row_mask:0xf bank_mask:0xf' for d in ('quad_perm:[1,0,3,2]', 'quad_perm:[2,3,0,1]', 'row_half_mirror')]
    uid = [0]

    def stamp(k):
        if stamps or (fin and k == 0): a(f's_memrealtime s[{72+2*k}:{73+2*k}]')
    def guard():
        a(f's_add_u32 s68, s68, 1\ns_cmp_gt_u32 s68, {limit}\ns_cbranch_scc1 L_abort')
    def spin_lds(off, val, tmp, sleep=1, extra=None, cached=False):
        uid[0] += 1; n = uid[0]
        a(f's_branch L_sp{n}c' if cached else f's_branch L_sp{n}b')
        a(f'L_sp{n}:')
        guard()
        if sleep: a(f's_sleep {sleep}')
        a(f'L_sp{n}b:')
        a(f'ds_read_b32 v{tmp}, v14 offset:{off}')
        if extra: a(extra)
        a('s_waitcnt lgkmcnt(0)')
        if cached: a(f'L_sp{n}c:')
        a(f'v_cmp_gt_i32 vcc, {val}, v{tmp}')
        a(f's_cbranch_vccnz L_sp{n}')
    def tagbytes():
        a('s_and_b32 s48, s52, 0xf8\ns_bfe_u32 s49, s52, 0x80008\ns_bfe_u32 s50, s52, 0x80010\ns_lshr_b32 s51, s52, 24')
    def tagwords():
        a('s_and_b32 s48, s52, 0xfff\ns_bfe_u32 s49, s52, 0xc0008\ns_bfe_u32 s50, s52, 0xc0010\ns_and_b32 s51, s52, 15\ns_lshl_b32 s51, s51, 8\ns_lshr_b32 s35, s52, 24\ns_or_b32 s51, s51, s35')
    def clean_check(base, nload, vor, first=True):
        for u in range(nload):
            r = base + 4 * u
            for e in range(4):
                a(f'v_xor_b32 v{r+e}, s{48+e}, v{r+e}')
            if first and u == 0:
                a(f'v_or3_b32 v{vor}, v{r}, v{r+1}, v{r+2}\nv_or_b32 v{vor}, v{vor}, v{r+3}')
            else:
                a(f'v_or3_b32 v{vor}, v{vor}, v{r}, v{r+1}\nv_or3_b32 v{vor}, v{vor}, v{r+2}, v{r+3}')
    def branch_if_bad(vor, label, m='0xff'):
        a(f'v_and_b32 v{vor}, {m}, v{vor}\nv_cmp_ne_u32 vcc, 0, v{vor}\ns_cbranch_vccnz {label}')
    def slow_path(base, nload, retry):
        a(f's_add_u32 s70, s70, 1\ns_cmp_lt_u32 s70, {ktry}\ns_cbranch_scc1 {retry}')
        a('s_mov_b32 exec_hi, 0\nbuffer_store_dwordx4 v[112:115], v111, s[44:47], s71 offen sc1\ns_mov_b64 exec, -1')
        a('v_mov_b32 v4, 0')
        for u in range(nload):
            r = base + 4 * u
            a(f'v_and_b32 v{r}, -8, v{r}\nv_or3_b32 v4, v4, v{r}, v{r+1}\nv_or3_b32 v4, v4, v{r+2}, v{r+3}')
        branch_if_bad(4, retry)
    def finish():
        a('s_branch L_fin' if fin else 's_endpgm')
    def count(off, rtn=None):
        op = f'ds_add_rtn_u32 v{rtn}, v14, v15' if rtn else 'ds_add_u32 v14, v15'
        a(f's_mov_b64 exec, 1\n{op} offset:{off}\ns_mov_b64 exec, -1')

    def sec_entry():
        stamp(0)
        a('s_load_dwordx16 s[8:23], s[0:1], 0\ns_load_dwordx8 s[24:31], s[0:1], 64\ns_load_dwordx2 s[32:33], s[0:1], 96')
        a('s_cmp_ge_u32 s2, 256\ns_cbranch_scc1 L_exit')
        a('v_lshrrev_b32 v1, 6, v0\nv_and_b32 v0, 63, v0')
        a('s_and_b32 s4, s2, 7\ns_lshr_b32 s5, s2, 3')
        a('v_readfirstlane_b32 s3, v1')
        a('v_lshrrev_b32 v1, 4, v0\nv_and_b32 v2, 15, v0')
        a(f'v_mov_b32 v14, {L_MISC}\nv_mov_b32 v15, 1')
        a('s_mov_b32 s39, 0x20000\ns_mov_b32 s43, 0x20000\ns_mov_b32 s47, 0x20000\ns_mov_b32 s67, 0x20000')
        a(f's_mov_b32 s46, {WS_SPAN}\ns_mov_b32 s68, 0')
        a('; s7 = FFN 64-column block, s34 = workgroups of this group with FFN work, s54 = i&3, s53 = i>>2')
        assert sum(nblk) == 28 and max(nblk) <= 4
        cn = sum(n << (4 * g) for g, n in enumerate(nblk))
        cd = sum((4 * g - sum(nblk[:g])) << (4 * g) for g in range(8))
        a(f's_lshl_b32 s53, s4, 2\ns_lshr_b32 s7, {hex(cd)}, s53\ns_and_b32 s7, s7, 15\ns_sub_u32 s7, s53, s7\ns_lshr_b32 s34, s5, 3\ns_add_u32 s7, s7, s34')
        a(f's_lshr_b32 s34, {hex(cn)}, s53\ns_and_b32 s34, s34, 15\ns_lshl_b32 s34, s34, 3')
        a('s_and_b32 s54, s5, 3\ns_lshr_b32 s53, s5, 2')
        a('s_cmp_eq_u32 s3, 0\ns_cbranch_scc1 L_loader')
        a('s_cmp_eq_u32 s3, 3\ns_cbranch_scc0 L_rest1')
        a('s_getpc_b64 s[60:61]')
        a('L_pc:')
        a('s_sub_u32 s60, s60, L_pc-L_first\ns_subb_u32 s61, s61, 0')
        a('v_lshlrev_b32 v3, 7, v0\nglobal_load_dword v122, v3, s[60:61]')
        a('v_add_u32 v3, 0x2000, v3\nv_min_u32 v3, L_abort-L_first, v3\ns_mov_b32 exec_hi, 0\nglobal_load_dword v123, v3, s[60:61]\ns_mov_b64 exec, -1')
        a('L_rest1:')
        a('s_waitcnt lgkmcnt(0)')
        a('s_mov_b64 s[44:45], s[32:33]')
        a('s_cmp_gt_u32 s3, 2\ns_cbranch_scc0 L_ab')
        a('s_barrier')
        a('s_cmp_lt_u32 s3, 11\ns_cbranch_scc1 L_att')
        a('s_branch L_c_main')
        a('L_exit:')
        a('s_endpgm')
        a('L_ab:')
        a('s_load_dword s52, s[32:33], 0')
        a('s_setprio 3')
        a('s_mov_b64 s[64:65], s[8:9]\ns_mov_b32 s66, 2048\ns_lshl_b32 s59, s54, 8')
        a('v_bfe_u32 v7, v2, 2, 1\nv_lshlrev_b32 v7, 10, v7\nv_lshl_add_u32 v7, v1, 4, v7\nv_lshlrev_b32 v13, 4, v0')
        for ks in range(4):
            a(f'buffer_load_dwordx4 v[{16+4*ks}:{19+4*ks}], v7, s[64:67], s59 offen offset:{ks*64}')
        a('s_cmp_eq_u32 s3, 1\ns_cbranch_scc1 L_ab1')
        a('s_mov_b64 s[40:41], s[26:27]\ns_mov_b32 s42, 1024')
        a('buffer_load_dwordx4 v[116:119], v13, s[64:67], 0 offen\nbuffer_load_dwordx4 v[120:123], v13, s[64:67], 0 offen offset:1024\nbuffer_load_dwordx4 v[124:127], v13, s[40:43], 0 offen')
        a('L_ab1:')
        a('s_barrier')
        a('s_branch L_ab2')

    def sec_loader(lab='L_loader'):
        nonlocal Ws, We
        a(lab + ':')
        a('s_setprio 2')
        a('v_mov_b32 v8, 0xff800000\nv_cmp_gt_u32 vcc, 4, v0\nv_lshl_add_u32 v3, v0, 2, v14\nv_cndmask_b32 v4, 0, v8, vcc\nds_write_b32 v3, v4')
        a('v_lshrrev_b32 v10, 3, v0\nv_and_b32 v11, 1, v1\nv_lshlrev_b32 v11, 1, v11\nv_and_b32 v12, 7, v0\nv_xor_b32 v11, v11, v12\nv_lshlrev_b32 v11, 4, v11')
        def tile_voff(stride):
            d = 8 * stride - 1024
            a(f'v_mul_u32_u24 v3, {stride}, v10\nv_add_u32 v3, v3, v11\nv_xor_b32 v4, 64, v3\nv_add_u32 v4, {d}, v4\nv_add_u32 v5, {2*d}, v3\nv_add_u32 v6, {2*d}, v4')
        def setup(ph):
            a(f'; ---- {ph}')
            if ph == 'wq':
                tile_voff(8192)
                a(f's_lshl_b32 s56, s4, 3\ns_add_u32 s56, s56, s53' + (f'\ns_xor_b32 s56, s56, {wqx}' if wqx else ''))
                a('s_lshl_b32 s57, s54, 13\ns_add_u32 s56, s56, s57\ns_lshl_b32 s56, s56, 7')
                return 's[14:15]', 0x400000, L_WQ, 32 * 8192
            if ph == 'gu':
                tile_voff(3584)
                a('s_mul_i32 s56, s54, 3584\ns_add_u32 s56, s56, s7\ns_lshl_b32 s56, s56, 7')
                return None, 1835008, L_GU, 32 * 3584
            if ph == 'k':
                a('s_lshr_b32 s60, s5, 4\ns_lshl_b32 s61, s60, 3\ns_add_u32 s61, s61, s4\ns_lshl_b32 s61, s61, 22')
                a('s_and_b32 s57, s5, 15\ns_lshl_b32 s62, s57, 16\ns_add_u32 s61, s61, s62\ns_add_u32 s61, s61, 0x300000')
                a(f's_mul_i32 s55, s57, {rot*4096}')
                a('v_xor_b32 v3, v1, v2\nv_lshlrev_b32 v3, 4, v3\nv_lshl_add_u32 v3, v1, 8, v3')
                a('v_xor_b32 v4, 64, v3\nv_xor_b32 v5, 0x80, v3\nv_xor_b32 v6, 0xc0, v3')
                return 's[10:11]', 0x4000000, 0, None
            if ph == 'v':
                a('v_lshlrev_b32 v3, 1, v1\nv_xor_b32 v3, v3, v2\nv_lshlrev_b32 v3, 4, v3\nv_lshl_add_u32 v3, v1, 8, v3')
                a('v_mov_b32 v4, v3\nv_xor_b32 v5, 0x80, v3\nv_xor_b32 v6, 0x80, v3')
                return 's[12:13]', 0x4000000, L_V, None
            if ph == 'wd':
                a('v_lshlrev_b32 v3, 10, v1\nv_lshl_add_u32 v3, v2, 4, v3\nv_add_u32 v4, 15360, v3\nv_add_u32 v5, 30720, v3\nv_add_u32 v6, 46080, v3')
                a('s_lshl_b32 s56, s7, 6\ns_and_b32 s57, s53, 1\ns_lshl_b32 s57, s57, 3\ns_add_u32 s56, s56, s57\ns_lshl_b32 s56, s56, 10\ns_lshl_b32 s57, s54, 8\ns_add_u32 s56, s56, s57')
                return 's[24:25]', 1835008, L_WD, 4096
            if ph == 'wo':
                a('v_lshlrev_b32 v3, 12, v1\nv_lshl_add_u32 v3, v2, 4, v3\nv_add_u32 v4, 15360, v3\nv_add_u32 v5, 30720, v3\nv_add_u32 v6, 46080, v3')
                a('s_lshl_b32 s56, s4, 3\ns_add_u32 s56, s56, s53\ns_lshl_b32 s56, s56, 16\ns_lshl_b32 s57, s54, 8\ns_add_u32 s56, s56, s57')
                return 's[16:17]', 0x400000, L_WO, 1024
        Ws = W if Ws is None else Ws
        We = W if We is None else We
        nb = Ws // 4
        known = [0]
        def signal(issued, upto):
            while known[0] < upto:
                known[0] += 1
                a(f'v_mov_b32 v9, {known[0]}\ns_waitcnt vmcnt({4*(issued-known[0])})\nds_write_b32 v14, v9 offset:{O_PROG}')
                if known[0] == G0['v'] + 16: stamp(3)
        first = True; kd_checked = False
        for ph in order:
            ptr, size, lds, gstep = setup(ph)
            a(f's_mov_b32 s38, {size}\ns_mov_b32 m0, {lds}')
            if first: a('s_waitcnt lgkmcnt(0)'); first = False
            if ph == 'gu': a('s_bitcmp0_b32 s5, 2\ns_cselect_b64 s[36:37], s[20:21], s[22:23]')
            else: a(f's_mov_b64 s[36:37], {ptr}')
            if ph in ('gu', 'wd'): a('s_cmp_lt_u32 s5, s34\ns_cselect_b32 s38, s38, 0')
            if lds < L_V and ph != 'k' and not kd_checked:
                spin_lds(O_KD, 8, 12, sleep=0); kd_checked = True
            p = pol if ph in ('k', 'v') else wpol
            win = (We if G0[ph] > G0['v'] else (Wv or W) if ph == 'v' else W) // 4
            g = G0[ph]; gend = g + NG[ph]
            while g < gend:
                free = nb if g < nb else known[0] + win
                waits = g >= free
                e = gend if waits else min(gend, free)
                if ph == 'v' and g < G0['v'] + 12: e = min(e, G0['v'] + 12)
                if waits:
                    signal(g, g - win)
                    a(f'v_mov_b32 v9, {known[0]}')
                uid[0] += 1; lid = uid[0]
                if e - g > 1: a(f'L_ld{lid}:')
                if gstep is None: a('s_and_b32 s55, s55, 0xffff\ns_add_u32 s56, s61, s55')
                if waits: a(f'v_add_u32 v9, 1, v9\ns_waitcnt vmcnt({4*win-4})\nds_write_b32 v14, v9 offset:{O_PROG}')
                for j in range(4):
                    a(f'buffer_load_dwordx4 v{3+j}, s[36:39], s56 offen offset:{j*1024} {p} lds')
                a('s_add_u32 s55, s55, 4096' if gstep is None else f's_add_u32 s56, s56, {gstep}')
                a('s_add_u32 m0, m0, 4096')
                if e - g > 1: a(f's_cmp_lt_u32 m0, {lds + (e-G0[ph])*4096}\ns_cbranch_scc1 L_ld{lid}')
                if waits: known[0] += e - g
                g = e
                if g == nb: a('s_waitcnt lgkmcnt(0)\ns_barrier')
                if ph == 'v' and g == G0['v'] + 12: spin_lds(O_GD, 2, 12, sleep=0)
            if ph == 'k': stamp(1)
            if ph == 'v': stamp(2)
        stamp(4)
        signal(END, END)
        stamp(5)
        a('s_waitcnt lgkmcnt(0)')
        finish()

    def sec_ab():
        a('L_ab2:')
        a('s_cmp_eq_u32 s3, 1')
        a(f's_mov_b32 s55, {L_GU}\ns_cselect_b32 s55, {L_WQ}, s55\ns_cselect_b32 s61, {G0["wq"]+1}, {G0["gu"]+1}')
        a('v_lshrrev_b32 v8, 2, v2\nv_lshl_add_u32 v8, v1, 3, v8\nv_lshlrev_b32 v8, 7, v8')
        a('v_and_b32 v9, 3, v2\nv_lshl_add_u32 v8, v9, 3, v8\nv_add_u32 v8, s55, v8')
        a('v_lshrrev_b32 v9, 3, v2\nv_and_b32 v10, 1, v1\nv_lshl_add_u32 v9, v10, 1, v9')
        a('v_lshl_add_u32 v8, v9, 5, v8')
        a('v_xor_b32 v9, 32, v8\nv_xor_b32 v10, 64, v8\nv_xor_b32 v11, 0x60, v8')
        a('v_mov_b32 v12, 0xffffff00')
        a(f's_lshl_b32 s56, s4, 14\ns_lshl_b32 s57, s54, 11\ns_add_u32 s56, s56, s57\ns_lshl_b32 s57, s53, 8\ns_add_u32 s56, s56, s57\ns_add_u32 s56, s56, {QB}' + (f'\ns_xor_b32 s56, s56, {wqx << 8}' if wqx else ''))
        a(f's_lshl_b32 s57, s7, 12\ns_and_b32 s58, s5, 7\ns_lshl_b32 s58, s58, 9\ns_add_u32 s57, s57, s58\ns_add_u32 s57, s57, {HB}')
        a('s_cmp_eq_u32 s3, 1\ns_cselect_b32 s71, s56, s57\ns_cselect_b32 s57, 13, 8')
        a('v_lshlrev_b32 v111, s57, v1\nv_lshl_add_u32 v111, v2, 4, v111')
        a('s_getreg_b32 s60, hwreg(HW_REG_XCC_ID, 0, 3)\ns_mov_b32 s70, 0')
        if force_global: a('s_add_u32 s60, s60, s5\ns_and_b32 s60, s60, 7')
        a('s_waitcnt lgkmcnt(0)')
        a('s_add_u32 s52, s52, 0x01010108')
        tagbytes()
        a('s_or_b32 s48, s48, s60')
        a('s_cmp_eq_u32 s3, 1\ns_cbranch_scc0 L_b_gate')
        a('L_ab_gemv:')
        stamp(1)
        a('v_mov_b32 v5, -1\ns_waitcnt vmcnt(0)')
        for ks in range(4):
            spin_lds(O_PROG, 's61', 5, sleep=0 if ks else 1, cached=True)
            for t in range(4):
                for h in range(2):
                    r = 32 + t * 4 + 2 * h + (ks & 1) * 16
                    a(f'ds_read_b64_tr_b16 v[{r}:{r+1}], v{8+t} offset:{ks*4096+h*512}')
            a('s_add_u32 s61, s61, 1')
            for t in range(4):
                a(f's_waitcnt lgkmcnt({6-2*t})')
                r = 32 + t * 4 + (ks & 1) * 16
                cacc = '0' if ks == 0 else f'v[{92+4*t}:{95+4*t}]'
                a(f'v_mfma_f32_16x16x32_bf16 v[{92+4*t}:{95+4*t}], v[{16+4*ks}:{19+4*ks}], v[{r}:{r+3}], {cacc}')
        stamp(2)
        count(O_GD)
        for t in range(4):
            a(f'v_add_u32 v{112+t}, 0x80, v{92+4*t}')
        for t in range(4):
            a(f'v_and_or_b32 v{112+t}, v{112+t}, v12, s{48+t}')
        a('s_mov_b32 exec_hi, 0\nbuffer_store_dwordx4 v[112:115], v111, s[44:47], s71 offen\ns_mov_b64 exec, -1')
        stamp(3)
        a('s_cmp_eq_u32 s3, 1\ns_cbranch_scc0 L_b_h')
        a('; ---- A: gather q')
        a(f's_lshl_b32 s56, s4, 14\ns_lshr_b32 s57, s5, 4\ns_lshl_b32 s57, s57, 13\ns_add_u32 s56, s56, s57\ns_add_u32 s56, s56, {QB}\ns_add_u32 s57, s56, 4096')
        a(f'v_lshrrev_b32 v3, 1, v1\nv_mul_u32_u24 v3, {QS}, v3\nv_and_b32 v4, 1, v1\nv_lshl_add_u32 v3, v4, 7, v3\nv_lshl_add_u32 v3, v2, 1, v3\nv_add_u32 v3, {L_Q}, v3')
        def qloads(b):
            for u in range(8):
                a(f'buffer_load_dwordx4 v[{b+4*u}:{b+3+4*u}], v13, s[44:47], s{56+u//4} offen offset:{(u%4)*1024} sc1')
        def qsum(b):
            for k in range(0, 8, 2):
                a(f'v_pk_add_f32 v[{b+k}:{b+k+1}], v[{b+k}:{b+k+1}], v[{b+k+8}:{b+k+9}]\nv_pk_add_f32 v[{b+k+16}:{b+k+17}], v[{b+k+16}:{b+k+17}], v[{b+k+24}:{b+k+25}]')
            for k in range(0, 8, 2):
                a(f'v_pk_add_f32 v[{16+k}:{17+k}], v[{b+k}:{b+k+1}], v[{b+k+16}:{b+k+17}]')
        a('v_mov_b32 v6, 2')
        if adel: spin_lds(O_PROG, G0['wq'] + 4 + adel, 5, sleep=1, cached=True)
        if agap:
            qloads(64)
            spin_lds(O_PROG, G0['wq'] + 4 + agap, 5, sleep=1)
            qloads(32)
            a('s_waitcnt vmcnt(8)')
            clean_check(64, 8, 4)
            branch_if_bad(4, 'L_a_chk')
            qsum(64)
            a('s_branch L_a_got')
        a('L_a_poll:')
        guard()
        qloads(32)
        a('L_a_chk:')
        a('s_waitcnt vmcnt(0)')
        clean_check(32, 8, 4)
        branch_if_bad(4, 'L_a_slow')
        a('L_a_ok:')
        qsum(32)
        a('L_a_got:')
        stamp(4)
        for hf in range(2):
            for e in (0, 2):
                r = 16 + 4 * hf + e
                a(f'v_cvt_pk_bf16_f32 v{r}, v{r}, v{r+1}')
                a(f'ds_write_b16 v3, v{r} offset:{hf*2*QS+e*32}\nds_write_b16_d16_hi v3, v{r} offset:{hf*2*QS+e*32+32}')
        a(f'v_mov_b32 v7, s52\nds_write_b64 v14, v[6:7] offset:{O_FT}')
        a('s_waitcnt lgkmcnt(0)')
        stamp(5)
        if numa and oracle is None: a('s_branch L_a_cal')
        else: finish()

    def sec_a_extra():
        a('L_a_slow:')
        slow_path(32, 8, 'L_a_poll')
        a('v_mov_b32 v6, 1\ns_branch L_a_ok')
        if numa:
            a('; ---- A: which of the two result copies is homed next to this XCD (speed only)')
            a('L_a_cal:')
            a(f's_lshr_b32 s56, s2, 6\ns_lshl_b32 s56, s56, 14\ns_and_b32 s57, s2, 63\ns_lshl_b32 s57, s57, 7\ns_add_u32 s56, s56, s57\ns_add_u32 s56, s56, {CAL}\ns_add_u32 s57, s56, 8192')
            a('v_mov_b32 v3, 0\ns_mov_b64 exec, 1\ns_setprio 0')
            spin_lds(O_PROG, END - 4, 5, sleep=8)
            spin_lds(O_R0, 4, 5, sleep=0)
            a('buffer_store_dword v3, v3, s[44:47], s56 offen sc1\nbuffer_store_dword v3, v3, s[44:47], s57 offen sc1')
            a('s_waitcnt vmcnt(1)\ns_memtime s[94:95]\ns_waitcnt vmcnt(0)\ns_memtime s[96:97]\ns_waitcnt lgkmcnt(0)')
            a(f's_sub_u32 s96, s96, s94\ns_cmp_gt_u32 s96, {thr}\ns_cselect_b32 s60, 1, 2\nv_mov_b32 v3, s60\nds_write_b32 v14, v3 offset:{O_R1}\ns_waitcnt lgkmcnt(0)')
            finish()

    def sec_b():
        a('L_b_gate:')
        a(f's_lshl_b32 s56, s7, 12\ns_and_b32 s57, s53, 1\ns_lshl_b32 s57, s57, 7\ns_add_u32 s56, s56, s57\ns_add_u32 s56, s56, {HB}')
        a('v_lshrrev_b32 v13, 3, v0\nv_lshlrev_b32 v13, 8, v13\nv_and_b32 v7, 7, v0\nv_lshl_add_u32 v13, v7, 4, v13')
        a('v_bfe_u32 v108, v0, 3, 1')
        a('v_and_b32 v110, 1, v1\nv_lshlrev_b32 v110, 7, v110\nv_lshl_add_u32 v110, v108, 5, v110\nv_and_b32 v109, 3, v0\nv_lshl_add_u32 v110, v109, 3, v110')
        a(f'v_lshrrev_b32 v109, 1, v1\nv_lshl_add_u32 v110, v109, 6, v110\nv_bfe_u32 v109, v0, 2, 1\nv_lshl_add_u32 v110, v109, 2, v110\nv_add_u32 v110, {L_HA}, v110')
        a('v_mov_b32 v4, 0\nv_mov_b32 v5, 0')
        a('s_waitcnt vmcnt(0)')
        for k in range(4): a(f'v_dot2c_f32_bf16 v4, v{116+k}, v{124+k}')
        for k in range(4): a(f'v_dot2c_f32_bf16 v5, v{120+k}, v{124+k}')
        a('v_permlane32_swap_b32 v4, v5\nv_add_f32 v4, v4, v5')
        a('v_mov_b32 v5, v4\nv_permlane16_swap_b32 v4, v5\nv_add_f32 v4, v4, v5')
        for s in (8, 4, 2, 1): a(f'v_add_f32_dpp v4, v4, v4 row_ror:{s} row_mask:0xf bank_mask:0xf')
        a('v_cvt_pk_bf16_f32 v4, v4, v4\nv_and_b32 v4, 0xffff0000, v4')
        a('v_mul_f32 v4, 0xbfb8aa3b, v4\nv_exp_f32 v4, v4\nv_add_f32 v4, 1.0, v4\nv_rcp_f32 v4, v4')
        a('v_cvt_pk_bf16_f32 v4, v4, v4\nv_and_b32 v4, 0xffff0000, v4')
        a('v_sub_f32 v5, 1.0, v4\nv_cvt_pk_bf16_f32 v5, v5, v5\nv_and_b32 v5, 0xffff0000, v5')
        a('v_lshrrev_b32 v6, 5, v0\nv_lshl_add_u32 v6, v6, 2, v14')
        a(f'ds_write2_b32 v6, v4, v5 offset0:{O_G//4} offset1:{O_G//4+2}')
        a(f'ds_write_b32 v14, v15 offset:{O_FG}')
        a(f'v_lshl_add_u32 v6, v108, 2, v14\nds_read_b32 v109, v6 offset:{O_G+8}')
        a('s_waitcnt lgkmcnt(0)')
        a('s_cmp_lt_u32 s5, s34\ns_cbranch_scc1 L_ab_gemv')
        count(O_GD)
        finish()
        a('L_b_slow:')
        slow_path(32, 2, 'L_b_poll')
        a('s_branch L_b_ok')
        a('L_b_h:')
        if bdel: spin_lds(O_PROG, G0['gu'] + 4 + bdel, 5, sleep=1, cached=True)
        a('L_b_poll:')
        guard()
        a('buffer_load_dwordx4 v[32:35], v13, s[44:47], s56 offen sc1\nbuffer_load_dwordx4 v[36:39], v13, s[44:47], s56 offen offset:2048 sc1')
        a('s_waitcnt vmcnt(0)')
        clean_check(32, 2, 4)
        branch_if_bad(4, 'L_b_slow')
        a('L_b_ok:')
        stamp(4)
        for r in (32, 36): a(f'v_permlane32_swap_b32 v{r}, v{r+1}\nv_permlane32_swap_b32 v{r+2}, v{r+3}')
        for r in (32, 36): a(f'v_add_f32 v{r}, v{r}, v{r+1}\nv_add_f32 v{r+2}, v{r+2}, v{r+3}')
        a('v_permlane16_swap_b32 v32, v34\nv_permlane16_swap_b32 v36, v38')
        a('v_add_f32 v32, v32, v34\nv_add_f32 v36, v36, v38')
        a('v_cvt_pk_bf16_f32 v32, v32, v36\nv_and_b32 v36, 0xffff0000, v32\nv_lshlrev_b32 v32, 16, v32')
        a('v_mul_f32 v33, 0xbfb8aa3b, v32\nv_exp_f32 v33, v33\nv_mul_f32 v36, v36, v109\nv_add_f32 v33, 1.0, v33\nv_rcp_f32 v33, v33\nv_mul_f32 v32, v32, v33')
        a('v_cvt_pk_bf16_f32 v32, v32, v32\nv_and_b32 v32, 0xffff0000, v32\nv_mul_f32 v32, v32, v36')
        a('v_cvt_pk_bf16_f32 v32, v32, v32\nds_write_b32 v110, v32')
        a(f'ds_write_b32 v14, v15 offset:{O_FB}')
        a('s_waitcnt lgkmcnt(0)')
        stamp(5)
        finish()

    def sec_att():
        a('L_att:')
        a('s_sub_u32 s3, s3, 3\ns_setprio 1\ns_lshl_b32 s55, s3, 13')
        a('v_xor_b32 v4, v1, v2\nv_lshlrev_b32 v3, 8, v2\nv_lshl_add_u32 v3, v4, 4, v3\nv_add_u32 v3, s55, v3')
        a('v_xor_b32 v4, 64, v3\nv_xor_b32 v5, 0x80, v3\nv_xor_b32 v6, 0xc0, v3')
        a(f'v_and_b32 v12, 3, v2\nv_mul_u32_u24 v13, {QS}, v12\nv_lshl_add_u32 v13, v1, 4, v13\nv_add_u32 v13, {L_Q}, v13')
        a(f's_lshl_b32 s56, s3, 6\ns_add_u32 s56, s56, {L_P}\nv_mul_u32_u24 v7, {PS}, v12\nv_lshl_add_u32 v7, v1, 3, v7\nv_add_u32 v7, s56, v7')
        a('v_lshl_add_u32 v12, v12, 2, v14')
        a(f'v_lshrrev_b32 v9, 2, v2\nv_mul_u32_u24 v8, {PS}, v9\nv_lshl_add_u32 v8, v1, 4, v8\nv_add_u32 v8, {L_P}, v8')
        a('v_lshl_add_u32 v10, v1, 3, v9\nv_lshlrev_b32 v10, 8, v10\nv_and_b32 v11, 1, v1\nv_lshl_add_u32 v9, v11, 2, v9\nv_xor_b32 v9, s3, v9\nv_lshl_add_u32 v10, v9, 5, v10')
        a(f'v_and_b32 v9, 3, v2\nv_lshl_add_u32 v10, v9, 3, v10\nv_add_u32 v10, {L_V}, v10')
        a('v_lshlrev_b32 v11, 14, v1\nv_lshl_add_u32 v11, v9, 2, v11\nv_lshrrev_b32 v72, 2, v2\nv_lshl_add_u32 v11, v72, 8, v11')
        a('s_and_b32 s57, s5, 7\ns_lshl_b32 s57, s57, 4\ns_bfe_u32 s60, s5, 0x10003\ns_lshl_b32 s60, s60, 10\ns_add_u32 s57, s57, s60\ns_lshr_b32 s60, s5, 4\ns_lshl_b32 s60, s60, 7\ns_add_u32 s57, s57, s60')
        a(f's_lshl_b32 s60, s4, 16\ns_add_u32 s57, s57, s60\ns_lshl_b32 s60, s3, 11\ns_add_u32 s57, s57, s60\ns_add_u32 s57, s57, {OB}')
        a(f's_lshl_b32 s56, s4, 5\ns_add_u32 s56, s56, s5\ns_lshl_b32 s56, s56, 6\ns_add_u32 s56, s56, {ST}')
        a('s_mov_b32 s58, 0x3db504f3\ns_mov_b32 s59, 0x3fb8aa3b')
        a('v_lshlrev_b32 v9, 3, v9\nv_mov_b32 v80, 0xfffff000\nv_lshlrev_b32 v81, 4, v1\nv_lshl_add_u32 v82, v1, 2, v14')
        a('v_mov_b32 v84, 0x3f803f80\nv_mov_b32 v85, v84\nv_mov_b32 v86, v84\nv_mov_b32 v87, v84')
        a(f's_lshl_b32 s61, s3, 1\ns_add_u32 s61, s61, {G0["k"]+2}')
        stamp(1)
        spin_lds(O_PROG, 's61', 72, sleep=2)
        stamp(2)
        for t in range(2):
            for ks in range(4):
                r = 16 + (t * 4 + ks) * 4
                a(f'ds_read_b128 v[{r}:{r+3}], v{3+ks} offset:{t*4096}')
        count(O_KD)
        spin_lds(O_FT, 1, 75, sleep=1, extra=f'ds_read_b32 v73, v14 offset:{O_TAG}')
        stamp(3)
        for ks in range(4): a(f'ds_read_b128 v[{48+4*ks}:{51+4*ks}], v13 offset:{ks*64}')
        a('v_readfirstlane_b32 s6, v75\nv_readfirstlane_b32 s52, v73\nv_alignbit_b32 v9, v73, v73, v9\nv_and_b32 v9, 0xfff, v9')
        tagwords()
        if stamps: a('s_waitcnt lgkmcnt(0)')
        for ks in range(4):
            if not stamps: a(f's_waitcnt lgkmcnt({3-ks})')
            for t in range(2):
                d = 64 + t * 4; kf = 16 + (t * 4 + ks) * 4
                cacc = '0' if ks == 0 else f'v[{d}:{d+3}]'
                a(f'v_mfma_f32_16x16x32_bf16 v[{d}:{d+3}], v[{kf}:{kf+3}], v[{48+4*ks}:{51+4*ks}], {cacc}')
        for t in range(2):
            d = 64 + t * 4
            a(f'v_cvt_pk_bf16_f32 v72, v{d}, v{d+1}\nv_cvt_pk_bf16_f32 v73, v{d+2}, v{d+3}')
            a(f'v_lshlrev_b32 v{d}, 16, v72\nv_and_b32 v{d+1}, 0xffff0000, v72\nv_lshlrev_b32 v{d+2}, 16, v73\nv_and_b32 v{d+3}, 0xffff0000, v73')
            for r in range(4): a(f'v_mul_f32 v{d+r}, s58, v{d+r}')
            a(f'v_cvt_pk_bf16_f32 v72, v{d}, v{d+1}\nv_cvt_pk_bf16_f32 v73, v{d+2}, v{d+3}')
            a(f'v_lshlrev_b32 v{d}, 16, v72\nv_and_b32 v{d+1}, 0xffff0000, v72\nv_lshlrev_b32 v{d+2}, 16, v73\nv_and_b32 v{d+3}, 0xffff0000, v73')
        a('v_max3_f32 v74, v64, v65, v66\nv_max3_f32 v74, v74, v67, v68\nv_max3_f32 v74, v74, v69, v70\nv_max_f32 v74, v74, v71')
        a('s_mov_b32 exec_lo, 0x000f000f\ns_mov_b32 exec_hi, 0x000f000f')
        a(f'ds_max_f32 v12, v74 offset:{O_MX}')
        count(O_CMAX)
        spin_lds(O_CMAX, 8, 72, sleep=0, extra=f'ds_read_b32 v74, v12 offset:{O_MX}')
        a('v_mul_f32 v74, 0xbfb8aa3b, v74')
        for r in range(8): a(f'v_fma_f32 v{64+r}, v{64+r}, s59, v74')
        for r in range(8): a(f'v_exp_f32 v{64+r}, v{64+r}')
        a('v_cvt_pk_bf16_f32 v76, v64, v65\nv_cvt_pk_bf16_f32 v77, v66, v67\nv_cvt_pk_bf16_f32 v78, v68, v69\nv_cvt_pk_bf16_f32 v79, v70, v71')
        a('s_mov_b32 exec_lo, 0x000f000f\ns_mov_b32 exec_hi, 0x000f000f')
        a('ds_write2_b64 v7, v[76:77], v[78:79] offset0:0 offset1:4')
        count(O_CL)
        spin_lds(O_CL, 8, 72, sleep=0)
        stamp(4)
        for ks in range(8): a(f'ds_read_b128 v[{16+4*ks}:{19+4*ks}], v8 offset:{ks*64}')
        a(f'ds_read_b32 v72, v14 offset:{O_PROG}\nds_read_b32 v73, v82 offset:{O_MX}')
        a('s_waitcnt lgkmcnt(0)')
        a('s_cmp_eq_u32 s3, 0\ns_cbranch_scc0 L_att_pv')
        for ks in range(8):
            cacc = '0' if ks == 0 else 'v[68:71]'
            a(f'v_mfma_f32_16x16x32_bf16 v[68:71], v[{16+4*ks}:{19+4*ks}], v[84:87], {cacc}')
        a('v_and_or_b32 v76, v73, v80, s48\nv_mov_b32 v78, s50\nv_mov_b32 v79, s51\nv_and_or_b32 v77, v68, v80, s49')
        a('s_mov_b32 exec_lo, 0x00010001\ns_mov_b32 exec_hi, 0x00010001')
        a('s_cmp_eq_u32 s6, 2\ns_cbranch_scc1 L_att_sl')
        a('buffer_store_dwordx4 v[76:79], v81, s[44:47], s56 offen sc1\ns_branch L_att_sd')
        a('L_att_sl:')
        a('buffer_store_dwordx4 v[76:79], v81, s[44:47], s56 offen')
        a('L_att_sd:')
        a('s_mov_b64 exec, -1')
        a('L_att_pv:')
        def pvmm(ks):
            r = 88 + 4 * ks
            cacc = '0' if ks == 0 else 'v[64:67]'
            a(f'v_mfma_f32_16x16x32_bf16 v[64:67], v[{16+4*ks}:{19+4*ks}], v[{r}:{r+3}], {cacc}')
        ks0 = 0; pend = []
        for ks1 in vph:
            spin_lds(O_PROG, G0['v'] + 2 * ks1, 72, sleep=0, cached=True)
            for ks in range(ks0, ks1):
                r = 88 + 4 * ks
                a(f'ds_read_b64_tr_b16 v[{r}:{r+1}], v10 offset:{ks*8192}\nds_read_b64_tr_b16 v[{r+2}:{r+3}], v10 offset:{ks*8192+1024}')
            new = list(range(ks0, ks1))
            todo = pend if pvpipe else new
            for ks in todo:
                a(f's_waitcnt lgkmcnt({2*(ks1-1-ks)})')
                pvmm(ks)
            pend = new if pvpipe else []
            ks0 = ks1
        for ks in pend:
            a(f's_waitcnt lgkmcnt({2*(7-ks)})')
            pvmm(ks)
        count(O_CO)
        a('s_cmp_eq_u32 s6, 2')
        a('v_and_or_b32 v64, v64, v80, v9')
        a('s_cbranch_scc0 L_att_g')
        a('buffer_store_dword v64, v11, s[44:47], s57 offen')
        stamp(5)
        finish()
        a('L_att_g:')
        a('buffer_store_dword v64, v11, s[44:47], s57 offen sc1')
        stamp(5)
        finish()

    def sec_c():
        sh = 14 if numa else 13
        def woread(n):
            a(f'ds_read_b128 v[{16+4*n}:{19+4*n}], v98 offset:{L_WO+n*4096}')
        def oloads():
            for u in range(2):
                a(f'buffer_load_dwordx4 v[{64+4*u}:{67+4*u}], v4, s[44:47], s62 offen offset:{u*1024} sc1')
        def sload():
            a('buffer_load_dwordx4 v[72:75], v6, s[44:47], s61 offen sc1')
        a('L_c_main:')
        a('s_sub_u32 s3, s3, 11')
        a('s_mov_b64 s[64:65], s[28:29]\ns_mov_b32 s66, 2048')
        a('s_lshl_b32 s55, s53, 2\ns_add_u32 s55, s55, s3')
        a(f's_lshl_b32 s61, s4, 11\ns_add_u32 s61, s61, {ST}')
        a(f's_lshl_b32 s62, s4, 16\ns_lshl_b32 s60, s55, 11\ns_add_u32 s62, s62, s60\ns_add_u32 s62, s62, {OB}')
        if warm:
            a('; bring the mailbox lines into L2 early')
            a('v_lshlrev_b32 v3, 7, v0\ns_sub_u32 s60, s61, 2048\nv_mov_b32 v4, s62\nv_mov_b32 v5, s60\nv_cmp_gt_u32 vcc, 16, v0\nv_cndmask_b32 v4, v5, v4, vcc\nv_add_u32 v3, v3, v4')
            a('s_mov_b32 exec_hi, 0\nbuffer_load_dword v122, v3, s[44:47], 0 offen sc1\ns_mov_b64 exec, -1')
        a('s_lshr_b32 s60, s53, 1\ns_lshl_b32 s60, s60, 4\ns_add_u32 s61, s61, s60')
        a('v_and_b32 v12, 1, v0\nv_lshlrev_b32 v12, 4, v12\nv_mov_b32 v13, 0xffff\nv_lshlrev_b32 v12, v12, v13\nv_bfe_u32 v13, v0, 1, 2')
        for k in range(4): a(f'v_cmp_eq_u32 vcc, {k}, v13\nv_cndmask_b32 v{8+k}, 0, v12, vcc')
        a('v_lshrrev_b32 v4, 3, v0\nv_and_b32 v5, 7, v0\nv_bfe_u32 v12, v0, 3, 1\nv_and_b32 v13, 1, v1\nv_lshlrev_b32 v6, 6, v5\nv_lshl_add_u32 v6, v13, 9, v6\nv_lshl_add_u32 v6, v12, 10, v6')
        a(f'v_lshlrev_b32 v126, {sh}, v4\nv_lshl_add_u32 v126, v5, 4, v126')
        a(f's_lshl_b32 s60, s3, 6\ns_add_u32 s60, s60, {L_HA}\nv_lshlrev_b32 v3, 5, v12\nv_lshl_add_u32 v3, v1, 3, v3\nv_add_u32 v3, s60, v3')
        a('v_lshl_add_u32 v72, v12, 2, v14')
        a('v_mov_b32 v124, 0xfffff000\nv_lshlrev_b32 v4, 4, v0\nv_lshlrev_b32 v125, 7, v0')
        a(f's_lshl_b32 s63, s3, 10\nv_add_u32 v98, s63, v4\nv_add_u32 v13, {L_CR}, v98\nv_xor_b32 v7, 0x400, v13\nv_xor_b32 v12, 0x800, v13\nv_xor_b32 v99, 0xc00, v13')
        a('v_and_b32 v2, 1, v1\nv_lshlrev_b32 v2, 2, v2\nv_and_b32 v1, 2, v1\nv_add_u32 v2, v2, v1')
        a(f's_lshl_b32 s59, s4, 3\ns_add_u32 s59, s59, s53\ns_lshl_b32 s58, s54, {sh+3}\ns_add_u32 s58, s58, {PB}')
        a('s_lshl_b32 s57, s59, 7\ns_add_u32 s57, s57, s58')
        a(f's_lshl_b32 s60, s4, {sh}\ns_add_u32 s58, s58, s60\ns_lshl_b32 s60, s53, 4\ns_add_u32 s58, s58, s60')
        a('s_lshr_b32 s60, s59, 5\ns_lshl_b32 s60, s60, 10\ns_lshl_b32 s63, s54, 8\ns_add_u32 s60, s60, s63\ns_and_b32 s63, s59, 15\ns_lshl_b32 s63, s63, 4\ns_add_u32 s60, s60, s63\ns_bfe_u32 s63, s59, 0x10004\ns_lshl_b32 s63, s63, 3\ns_add_u32 s60, s60, s63')
        if numa: a('s_add_u32 s56, s57, 8192\ns_add_u32 s55, s58, 8192')
        if oracle is not None:
            a(f's_lshr_b32 s63, s4, 2\ns_cmp_eq_u32 s63, {oracle}\ns_cselect_b32 s58, s58, s55')
            if ofirst == 1: a('s_cselect_b32 s63, s56, s57\ns_cselect_b32 s56, s57, s56\ns_mov_b32 s57, s63')
            if ofirst == 2: a('s_cselect_b32 s63, s57, s56\ns_cselect_b32 s56, s56, s57\ns_mov_b32 s57, s63')
        spin_lds(O_FG, 1, 127, sleep=8, extra=f'ds_read_b32 v123, v72 offset:{O_G}')
        a('v_mov_b32 v112, 0\nv_mov_b32 v113, 0')
        a('s_cmp_ge_u32 s5, s34\ns_cbranch_scc1 L_c_noh')
        spin_lds(O_FB, 1, 127, sleep=4, extra='ds_read_b64 v[112:113], v3')
        a('L_c_noh:')
        for n in range(2):
            for k in range(4): a(f'v_and_b32 v{40+4*n+k}, v{112+n}, v{8+k}')
        spin_lds(O_CL, 8, 127, sleep=4, extra=f'ds_read_b32 v97, v14 offset:{O_TAG}')
        a('v_readfirstlane_b32 s52, v97')
        tagwords()
        a('s_setprio 3')
        stamp(1)
        spin_lds(O_CO, 8, 127, sleep=cosleep, extra=f'ds_read_b32 v114, v14 offset:{O_PROG}')
        spin_lds(O_PROG, END - lead, 114, sleep=0, cached=True)
        stamp(3)
        oloads(); sload()
        if stamps: a('s_waitcnt lgkmcnt(0)')
        for n in range(2): a(f'ds_read_b128 v[{32+4*n}:{35+4*n}], v98 offset:{L_WD+n*4096}')
        nearly = 4 - lead
        for n in range(nearly): woread(n)
        for n in range(2):
            a(f's_waitcnt lgkmcnt({nearly+1-n})')
            cacc = '0' if n == 0 else 'v[100:103]'
            a(f'v_mfma_f32_16x16x32_bf16 v[100:103], v[{40+4*n}:{43+4*n}], v[{32+4*n}:{35+4*n}], {cacc}')
        def xcheck(pend):
            for u in range(2):
                a(f's_waitcnt vmcnt({pend+1-u})')
                clean_check(64 + 4 * u, 1, 5, first=(u == 0))
            a('v_and_b32 v5, 0xfff, v5\nv_cmp_ne_u32 vcc, 0, v5')
        xcheck(1)
        a('s_waitcnt vmcnt(0)\ns_mov_b64 s[70:71], vcc\ns_cbranch_vccz L_c_schk')
        a('s_mov_b64 exec, vcc')
        oloads()
        a('s_mov_b64 exec, -1\ns_branch L_c_schk')
        a('L_c_late:')
        spin_lds(O_PROG, END, 127, sleep=0)
        for n in range(nearly, 4): woread(n)
        a('s_waitcnt lgkmcnt(0)\ns_branch L_c_mm')
        a('L_c_stat:')
        guard()
        a('s_sleep 2')
        sload()
        a('s_waitcnt vmcnt(0)')
        a('L_c_schk:')
        clean_check(72, 1, 76)
        a(f'v_max_f32_dpp v96, v72, v72 {DP[0]}')
        branch_if_bad(76, 'L_c_stat', '0xfff')
        a(f'v_max_f32_dpp v96, v96, v96 {DP[1]}')
        a(f'ds_read_b32 v127, v14 offset:{O_PROG}')
        late = list(range(nearly, 4))
        def fill():
            if late: woread(late.pop(0))
        fill()
        a(f'v_max_f32_dpp v96, v96, v96 {DP[2]}')
        a('v_mov_b32 v97, v96')
        fill(); fill()
        a('v_permlane16_swap_b32 v96, v97\nv_max_f32 v96, v96, v97')
        a('v_sub_f32 v96, v72, v96\nv_mul_f32 v96, 0x3fb8aa3b, v96\nv_exp_f32 v96, v96')
        fill()
        a('v_mul_f32 v112, v96, v73\nv_mul_f32 v96, v96, v123\nv_mov_b32 v97, v96')
        a(f'v_add_f32_dpp v112, v112, v112 {DP[0]}')
        a('s_cmp_eq_u64 s[70:71], 0')
        a('v_permlane16_swap_b32 v96, v97')
        a(f'v_add_f32_dpp v112, v112, v112 {DP[1]}')
        stamp(2)
        a('s_cbranch_scc1 L_c_ook')
        a('s_mov_b64 exec, s[70:71]\ns_branch L_c_oloop')
        a('L_c_oy:')
        a('s_mov_b64 exec, vcc')
        guard()
        oloads()
        a('L_c_oloop:')
        xcheck(0)
        a('s_cbranch_vccnz L_c_oy')
        if not (numa and calearly): a('s_mov_b64 exec, -1')
        a('L_c_ook:')
        if numa and calearly: count(O_R0)
        stamp(4)
        for e in range(2): a(f'v_mul_f32 v{104+e}, v96, v{64+e}')
        a(f'v_add_f32_dpp v112, v112, v112 {DP[2]}')
        for e in range(2, 4): a(f'v_mul_f32 v{104+e}, v96, v{64+e}')
        a('v_mov_b32 v113, v112')
        for e in range(4): a(f'v_fmac_f32 v{104+e}, v97, v{68+e}')
        a('v_permlane16_swap_b32 v112, v113')
        for k, d in enumerate(DP):
            for e in range(4): a(f'v_add_f32_dpp v{104+e}, v{104+e}, v{104+e} {d}')
            if k == 0: a('v_add_f32 v112, v112, v113')
            if k == 1: a('v_rcp_f32 v112, v112')
        for e in range(4): a(f'v_mul_f32 v{104+e}, v{104+e}, v112')
        if numa and not calearly: count(O_R0)
        for e in range(4): a(f'v_cvt_pk_bf16_f32 v{104+e}, v{104+e}, v{104+e}')
        def ands(n):
            d = 116 + 4 * (n & 1)
            for k in range(4): a(f'v_and_b32 v{d+k}, v{104+n}, v{8+k}')
        ands(0)
        a(f's_waitcnt lgkmcnt({1 if numa and not stamps else 0})')
        a(f'v_cmp_gt_i32 vcc, {END}, v127\ns_cbranch_vccnz L_c_late')
        a('L_c_mm:')
        for n in range(4):
            if n < 3: ands(n + 1)
            d = 116 + 4 * (n & 1)
            a(f'v_mfma_f32_16x16x32_bf16 v[100:103], v[{d}:{d+3}], v[{16+4*n}:{19+4*n}], v[100:103]')
        a('ds_write_b128 v13, v[100:103]')
        count(O_CC, rtn=127)
        a('ds_read_b128 v[104:107], v7\nds_read_b128 v[108:111], v12\nds_read_b128 v[112:115], v99')
        a('s_waitcnt lgkmcnt(2)')
        a('v_readfirstlane_b32 s63, v127')
        a('v_pk_add_f32 v[104:105], v[104:105], v[100:101]\nv_pk_add_f32 v[106:107], v[106:107], v[102:103]')
        a('s_cmp_eq_u32 s63, 3\ns_cbranch_scc0 L_c_end')
        a('s_waitcnt lgkmcnt(0)')
        a('v_pk_add_f32 v[108:109], v[108:109], v[112:113]\nv_pk_add_f32 v[110:111], v[110:111], v[114:115]')
        a('v_pk_add_f32 v[104:105], v[104:105], v[108:109]\nv_pk_add_f32 v[106:107], v[106:107], v[110:111]')
        for k in range(4): a(f'v_and_or_b32 v{104+k}, v{104+k}, v124, s{48+k}')
        a('buffer_store_dwordx4 v[104:107], v126, s[44:47], s57 offen sc1')
        if numa:
            a('buffer_store_dwordx4 v[104:107], v126, s[44:47], s56 offen sc1')
            if oracle is None:
                spin_lds(O_R1, 1, 108, sleep=1)
                a('v_cmp_eq_u32 vcc, 1, v108\ns_cmp_lg_u64 vcc, 0\ns_cselect_b32 s58, s58, s55')
        stamp(5)
        a(f's_waitcnt vmcnt({h2wait})\ns_branch L_c_fp1')
        a('L_c_fpoll:')
        a('s_mov_b64 exec, vcc')
        guard()
        a('L_c_fp1:')
        a('buffer_load_dwordx4 v[64:67], v125, s[44:47], s58 offen sc1')
        a('s_waitcnt vmcnt(0)')
        clean_check(64, 1, 5)
        branch_if_bad(5, 'L_c_fpoll', '0xfff')
        a('s_mov_b64 exec, -1')
        stamp(6)
        a('v_permlane32_swap_b32 v64, v65\nv_permlane32_swap_b32 v66, v67\nv_add_f32 v64, v64, v65\nv_add_f32 v66, v66, v67')
        a('v_permlane16_swap_b32 v64, v66\nv_add_f32 v64, v64, v66')
        for s in (8, 4, 2, 1): a(f'v_add_f32_dpp v64, v64, v64 row_ror:{s} row_mask:0xf bank_mask:0xf')
        a('v_cvt_pk_bf16_f32 v64, v64, v64')
        a('s_mov_b32 exec_lo, 0x00010001\ns_mov_b32 exec_hi, 0x00010001')
        a('buffer_store_short v64, v2, s[64:67], s60 offen')
        a('s_cmp_eq_u32 s2, 0\ns_cbranch_scc0 L_c_end')
        a('; every workgroup has used the tag by now: it becomes the next launch\'s epoch')
        a('s_mov_b64 exec, 1\nv_mov_b32 v4, s52\nv_mov_b32 v5, 0\nbuffer_store_dword v4, v5, s[44:47], 0 offen')
        a('L_c_end:')
        stamp(7)

    def sec_fin():
        a('L_fin:')
        a('s_mov_b64 exec, -1\ns_waitcnt lgkmcnt(0) vmcnt(0)')
        a('s_memrealtime s[90:91]\ns_getreg_b32 s92, hwreg(HW_REG_XCC_ID)\ns_waitcnt lgkmcnt(0)')
        if not ampall:
            for k in range(11): a(f'v_writelane_b32 v4, s{72+2*k}, {k}')
            a('v_writelane_b32 v4, s68, 11\ns_getreg_b32 s93, hwreg(HW_REG_HW_ID)\nv_writelane_b32 v4, s93, 12')
            a(f's_mul_i32 s60, s2, {NW}\ns_add_u32 s60, s60, s69\ns_lshl_b32 s60, s60, 6\ns_add_u32 s60, s60, {STAMP}')
            a('v_lshlrev_b32 v3, 2, v0\nv_add_u32 v3, s60, v3\ns_mov_b64 exec, 0xffff\nglobal_store_dword v3, v4, s[32:33]')
        else:
            a(f's_cmp_eq_u32 s69, 0\ns_cbranch_scc0 L_am1\ns_lshl_b32 s60, s2, 2\ns_add_u32 s60, s60, {STAMP}\nv_mov_b32 v3, s60\nv_mov_b32 v5, s72\ns_mov_b64 exec, 1\nglobal_store_dword v3, v5, s[32:33] sc1\ns_endpgm')
            a('L_am1:')
            a('s_cmp_eq_u32 s2, 0\ns_cbranch_scc0 L_abort\ns_cmp_ge_u32 s69, 11\ns_cbranch_scc0 L_abort')
            a(f's_sleep 100\nv_lshlrev_b32 v3, 4, v0\nv_add_u32 v3, {STAMP}, v3\nglobal_load_dwordx4 v[8:11], v3, s[32:33] sc1\ns_waitcnt vmcnt(0)')
            a('v_subrev_u32 v8, s72, v8\nv_subrev_u32 v9, s72, v9\nv_subrev_u32 v10, s72, v10\nv_subrev_u32 v11, s72, v11\nv_min3_i32 v8, v8, v9, v10\nv_min_i32 v8, v8, v11\nv_max_i32 v8, 0xfffffe00, v8')
            a('s_mov_b32 s61, 0\ns_mov_b32 s62, 0\nL_am2:\ns_nop 4\nv_readlane_b32 s63, v8, s62\ns_nop 4\ns_min_i32 s61, s61, s63\ns_add_u32 s62, s62, 1\ns_cmp_lt_u32 s62, 64\ns_cbranch_scc1 L_am2')
            if ampsel == 'xcc': a('s_and_b32 s60, s92, 7\ns_mul_i32 s60, s60, 100\ns_add_u32 s90, s72, s60\ns_add_u32 s90, s90, s61')
            elif ampsel is not None:
                a(f'v_mov_b32 v3, {STAMP+4*ampsel}\nglobal_load_dword v9, v3, s[32:33] sc1\ns_waitcnt vmcnt(0)\nv_readfirstlane_b32 s60, v9\ns_nop 4\ns_sub_u32 s60, s60, s72\ns_sub_u32 s60, s60, s61\ns_mul_i32 s60, s60, 10\ns_add_u32 s90, s72, s60\ns_add_u32 s90, s90, s61')
            a('s_sub_u32 s60, s90, s72\ns_sub_u32 s60, s60, s61\ns_mul_i32 s60, s60, 10\ns_min_u32 s60, s60, 100000\ns_add_u32 s60, s60, 2000\ns_add_u32 s60, s60, s61')
            a('L_am3:\ns_memrealtime s[62:63]\ns_waitcnt lgkmcnt(0)\ns_sub_u32 s62, s62, s72\ns_cmp_lt_u32 s62, s60\ns_cbranch_scc1 L_am3')

    a.raw(HDR.rstrip('\n'))
    a.raw(f'; @launch grid=(256,1,1) block=({NW*64},1,1) lds={LDS_BYTES}')
    a.raw(DOC)
    a.raw('.amdgcn_target "amdgcn-amd-amdhsa--gfx950"')
    a.raw('.text\n.p2align 12')
    a('L_first:')
    sec_att(); sec_b(); sec_a_extra()
    a.raw('.fill (0xd00 - (. - L_first)) / 4, 4, 0xbf810000')
    a.raw(f'.globl {KN}\n.p2align 8\n.type {KN},@function\n{KN}:')
    a.flush_hist()
    if split:
        sec_entry()
        a('L_loader:')
        a(f's_getreg_b32 s60, hwreg(HW_REG_XCC_ID, 0, 3)\ns_bitcmp1_b32 {split[0]}, s60\ns_cbranch_scc1 L_loader2')
        Ws = 36
        W, Wv = split[1], split[2]
        sec_loader('L_loader1')
        sec_ab()
        a.raw('.p2align 12')
        W, Wv = split[3], split[4]
        sec_loader('L_loader2')
    else:
        sec_entry(); sec_loader(); sec_ab()
    a.raw('.p2align 12')
    sec_c()
    if fin: sec_fin()
    a('L_abort:')
    a('s_endpgm')
    a.raw('.section .rodata,"a"\n.p2align 6')
    a.raw(f'.amdhsa_kernel {KN}')
    a.raw('  .amdhsa_next_free_vgpr 128\n  .amdhsa_next_free_sgpr 102\n  .amdhsa_accum_offset 128\n  .amdhsa_group_segment_fixed_size 0\n  .amdhsa_kernarg_size 104')
    a.raw('  .amdhsa_user_sgpr_count 2\n  .amdhsa_user_sgpr_kernarg_segment_ptr 1\n  .amdhsa_system_sgpr_workgroup_id_x 1\n.end_amdhsa_kernel')
    txt = a.text()
    if fin:
        z = ''.join(f'    s_mov_b32 s{74+2*k}, 0\n' for k in range(8)) if stamps else ''
        txt = txt.replace('    v_readfirstlane_b32 s3, v1\n', '    v_readfirstlane_b32 s3, v1\n    s_nop 1\n    s_mov_b32 s69, s3\n' + z, 1)
    return txt

if __name__ == '__main__':
    kw = eval('dict(%s)' % (sys.argv[2] if len(sys.argv) > 2 else ''))
    open(sys.argv[1], 'w').write(gen(**kw))
```
